```python
import torch

def _softmax(x, axis=-1):
    return torch.softmax(x, dim=axis)
def _gelu(x):
    return torch.nn.functional.gelu(x, approximate="tanh")
def _silu(x):
    return torch.nn.functional.silu(x)
def _sigmoid(x):
    return torch.sigmoid(x)
def _layernorm(x, axis=-1, eps=1e-5):
    m = x.mean(dim=axis, keepdim=True)
    v = x.var(dim=axis, keepdim=True, unbiased=False)
    return (x - m) / torch.sqrt(v + eps)
def _scatter_add(tgt, idx, src, axis=0):
    return tgt.clone().index_add_(axis, idx, src)
def _segment_sum(src, seg, n):
    out = torch.zeros((n,) + src.shape[1:], dtype=src.dtype)
    return out.index_add_(0, seg, src)
def _pad(x, pw):
    flat = tuple(v for pair in reversed(pw) for v in pair)
    return torch.nn.functional.pad(x, flat)

kernel_name = 'concat_heads__mha_block_cached__gqa_block_cached__near_ridge'

def setup_inputs():

    _w = (lambda a: (lambda t: t.to(torch.bfloat16) if t.is_floating_point() else t)(torch.as_tensor(a)))
    def _A_setup():
        B, Sq, D = 8, 96, 512
        H, Sk, Dh = 32, 512, 128
        return {
            "x": _w((lambda *s: torch.randn(*s, dtype=torch.bfloat16) * 0.8)(B, Sq, D)),
            "k_cache": _w((lambda *s: torch.randn(*s, dtype=torch.bfloat16) * 0.8)(B, H, Sk, Dh)),
            "v_cache": _w((lambda *s: torch.randn(*s, dtype=torch.bfloat16) * 0.05)(B, H, Sk, Dh)),
            "wq": _w((lambda *s: torch.randn(*s, dtype=torch.bfloat16) * 0.8)(D, H * Dh) * (D ** -0.5)),
            "wo": _w((lambda *s: torch.randn(*s, dtype=torch.bfloat16) * 0.05)(H * Dh, D) * ((H * Dh) ** -0.5)),
        }
    _A_in = _A_setup()

    def _B_setup():
        B, Sq, D = 8, 96, 512
        Hq, Hkv, Sk, Dh = 32, 32, 512, 128
        assert Hq % Hkv == 0, (Hq, Hkv)
        return {
            "x": _w((lambda *s: torch.randn(*s, dtype=torch.bfloat16) * 0.8)(B, Sq, D)),
            "k_cache": _w((lambda *s: torch.randn(*s, dtype=torch.bfloat16) * 0.8)(B, Hkv, Sk, Dh)),
            "v_cache": _w((lambda *s: torch.randn(*s, dtype=torch.bfloat16) * 0.05)(B, Hkv, Sk, Dh)),
            "wq": _w((lambda *s: torch.randn(*s, dtype=torch.bfloat16) * 0.8)(D, Hq * Dh) * (D ** -0.5)),
            "wo": _w((lambda *s: torch.randn(*s, dtype=torch.bfloat16) * 0.05)(Hq * Dh, D) * ((Hq * Dh) ** -0.5)),
        }
    _B_in = _B_setup()

    return {
        "A_x": _A_in["x"],
        "A_k_cache": _A_in["k_cache"],
        "A_v_cache": _A_in["v_cache"],
        "A_wq": _A_in["wq"],
        "A_wo": _A_in["wo"],
        "B_x": _B_in["x"],
        "B_k_cache": _B_in["k_cache"],
        "B_v_cache": _B_in["v_cache"],
        "B_wq": _B_in["wq"],
        "B_wo": _B_in["wo"],
    }

def reference(A_x, A_k_cache, A_v_cache, A_wq, A_wo, B_x, B_k_cache, B_v_cache, B_wq, B_wo):
    def _A_ref(x, k_cache, v_cache, wq, wo):
        B, Sq, D = x.shape
        H, Dh = 32, 128
        q = (lambda x, *d: x.permute(*d))((x @ wq).reshape(B, Sq, H, Dh), 0, 2, 1, 3)
        scores = torch.einsum("bhqd,bhkd->bhqk", q, k_cache) * (Dh ** -0.5)
        p = _softmax(scores, axis=-1)
        o = torch.einsum("bhqk,bhkd->bhqd", p, v_cache)
        return (lambda x, *d: x.permute(*d))(o, 0, 2, 1, 3).reshape(B, Sq, H * Dh) @ wo

    def _B_ref(x, k_cache, v_cache, wq, wo):
        B, Sq, D = x.shape
        Hq, Dh = 32, 128
        Hkv = k_cache.shape[1]
        rep = Hq // Hkv
        q = (lambda x, *d: x.permute(*d))((x @ wq).reshape(B, Sq, Hq, Dh), 0, 2, 1, 3)
        k = (lambda x, n, axis: torch.repeat_interleave(x, n, dim=axis))(k_cache, rep, axis=1)
        v = (lambda x, n, axis: torch.repeat_interleave(x, n, dim=axis))(v_cache, rep, axis=1)
        scores = torch.einsum("bhqd,bhkd->bhqk", q, k) * (Dh ** -0.5)
        p = _softmax(scores, axis=-1)
        o = torch.einsum("bhqk,bhkd->bhqd", p, v)
        return (lambda x, *d: x.permute(*d))(o, 0, 2, 1, 3).reshape(B, Sq, Hq * Dh) @ wo

    a = _A_ref(A_x, A_k_cache, A_v_cache, A_wq, A_wo)
    b = _B_ref(B_x, B_k_cache, B_v_cache, B_wq, B_wo)
    return torch.concatenate([a, b], axis=-1)
```

```python
KN = 'concat_heads__mha_block_cached__gqa_block_cached__near_ridge'

HEADER = """; Kernarg layout for this problem (104 bytes, ptrs only, base s[0:1]):
"""

class Asm:
    def __init__(self):
        self.lines = []
    def __call__(self, s=''):
        for l in s.split('\n'):
            self.lines.append(l)
    def label(self, n):
        self.lines.append(n + ':')
    def text(self):
        return '\n'.join(self.lines) + '\n'

def kernel_begin(a, name):
    a('.globl %s' % name)
    a('.p2align 8')
    a('.type %s,@function' % name)
    a('%s:' % name)

def kernel_desc(name, vgpr, accum, sgpr=102):
    return """.amdhsa_kernel %s
  .amdhsa_next_free_vgpr %d
  .amdhsa_next_free_sgpr %d
  .amdhsa_accum_offset %d
  .amdhsa_group_segment_fixed_size 0
  .amdhsa_kernarg_size 104
  .amdhsa_user_sgpr_count 2
  .amdhsa_user_sgpr_kernarg_segment_ptr 1
  .amdhsa_system_sgpr_workgroup_id_x 1
.end_amdhsa_kernel
""" % (name, vgpr, sgpr, accum)

def assemble_file(launches, body, descs):
    s = HEADER
    if len(launches) == 1 and launches[0][0] == KN + '_kernel':
        k, g, b, l = launches[0]
        s += '; @launch grid=(%d,1,1) block=(%d,1,1) lds=%d\n' % (g, b, l)
    else:
        for k, g, b, l in launches:
            s += '; @launch kernel=%s grid=(%d,1,1) block=(%d,1,1) lds=%d\n' % (k, g, b, l)
    s += '.amdgcn_target "amdgcn-amd-amdhsa--gfx950"\n.text\n'
    s += body
    s += '.section .rodata,"a"\n.p2align 6\n'
    for d in descs:
        s += d + '.p2align 6\n'
    return s
```

```python
import re

def regs_of(tok):
    tok = tok.strip()
    neg = tok.startswith('-')
    if neg: tok = tok[1:]
    m = re.fullmatch(r'([vas])(\d+)', tok)
    if m: return [(m.group(1), int(m.group(2)))]
    m = re.fullmatch(r'([vas])\[(\d+):(\d+)\]', tok)
    if m: return [(m.group(1), i) for i in range(int(m.group(2)), int(m.group(3)) + 1)]
    if tok == 'm0': return [('m', 0)]
    if tok == 'vcc': return [('s', 106), ('s', 107)]
    return []

def parse(line):
    s = line.split(';')[0].strip()
    if not s or s.endswith(':') or s.startswith('.'): return None
    p = s.split(None, 1)
    mn = p[0]
    rest = p[1] if len(p) > 1 else ''
    toks = [t.strip() for t in rest.split(',')]
    mods = ''
    if toks:
        last = toks[-1].split(None, 1)
        if len(last) > 1:
            toks[-1] = last[0]; mods = last[1]
        elif last and (':' in last[0] and not last[0].startswith(('v[', 's[', 'a['))):
            toks[-1] = ''; mods = last[0]
    toks = [t for t in toks if t != '']
    return mn, toks, mods

TRANS = ('v_exp_f32', 'v_rcp_f32', 'v_log_f32', 'v_rsq_f32', 'v_sqrt_f32')

def rw(mn, toks, mods):
    R = lambda i: regs_of(toks[i]) if i < len(toks) else []
    allr = lambda a: [r for t in toks[a:] for r in regs_of(t)]
    if mn.startswith('v_mfma'):
        return 'mfma', R(0), allr(1)
    if mn.startswith('v_permlane'):
        return 'valu', R(0) + R(1), R(0) + R(1)
    if mn in ('v_fmac_f32',):
        return 'valu', R(0), allr(0)
    if mn.startswith('v_cmp'):
        return 'valu', R(0), allr(1)
    if mn.startswith('v_'):
        return 'valu', R(0), allr(1)
    if mn.startswith('ds_read'):
        return 'ds', R(0), allr(1)
    if mn.startswith('ds_write'):
        return 'ds', [], allr(0)
    if mn.startswith('buffer_load'):
        if 'lds' in mods.split():
            return 'vm', [], allr(0) + [('m', 0)]
        return 'vm', R(0), allr(1)
    if mn.startswith('buffer_store') or mn.startswith('buffer_atomic'):
        return 'vm', [], allr(0)
    if mn.startswith('s_load') or mn == 's_memtime':
        return 'smem', R(0), allr(1)
    if mn in ('s_waitcnt', 's_barrier', 's_nop', 's_endpgm', 's_branch', 's_setprio', 's_sleep') or mn.startswith('s_cbranch'):
        return 'ctl', [], []
    if mn.startswith('s_cmp'):
        return 'salu', [], allr(0)
    if mn.startswith('s_'):
        return 'salu', R(0), allr(1)
    raise ValueError('unknown instr ' + mn)

def fix(lines, verbose=None):
    out = []
    hist = []
    pos = 0
    total = 0
    for line in lines:
        p = parse(line)
        if p is None:
            out.append(line); continue
        mn, toks, mods = p
        cls, W, Rd = rw(mn, toks, mods)
        vR = set(r for r in Rd if r[0] in 'va'); vW = set(r for r in W if r[0] in 'va')
        need = 0
        why = ''
        for (hp, hc, hm, hW, hR, hC) in hist:
            d = pos - hp - 1
            req = 0
            hWv = hW
            if hc == 'valu':
                if cls == 'mfma' and (hWv & vR): req = max(req, 2)
                if mn.startswith('v_permlane') and (hWv & vR): req = max(req, 2)
                if mn.startswith('v_readfirstlane') and (hWv & vR): req = max(req, 1)
                if hm in TRANS and cls == 'valu' and mn not in TRANS and (hWv & vR): req = max(req, 1)
                if hm in TRANS and cls in ('ds', 'vm', 'mfma') and (hWv & vR): req = max(req, 2 if cls == 'mfma' else 1)
                sW = set(r for r in hW if r[0] == 's')
                sR = set(r for r in Rd if r[0] == 's')
                if sW & sR:
                    if cls == 'vm': req = max(req, 5)
                    if cls == 'valu': req = max(req, 2)
            if hc == 'mfma':
                if cls == 'mfma':
                    D = hW
                    srcC = set(regs_of(toks[3]))
                    srcAB = set(regs_of(toks[1]) + regs_of(toks[2]))
                    if D & srcAB: req = max(req, 8)
                    if (D & srcC) and D != srcC: req = max(req, 6)
                    if (D & vW) and not (D & srcC): req = max(req, 8)
                else:
                    if cls in ('valu', 'ds', 'vm') and (hW & (vR | vW)): req = max(req, 8)
                    if cls == 'valu' and (hC & vW): req = max(req, 3)
            if hc == 'vm' and hm.startswith('buffer_store_dwordx') and hm[-1] in '34':
                if (hR & vW): req = max(req, 2 if cls == 'valu' else 1)
            if hc == 'salu' and ('m', 0) in hW and ('m', 0) in Rd and cls == 'vm': req = max(req, 1)
            if req - d > need:
                need = req - d; why = hm
        if need > 0:
            if verbose is not None: verbose.append((need, why, line.strip()))
            total += need
            n = need
            while n > 0:
                k = min(n, 16)
                out.append('  s_nop %d' % (k - 1))
                n -= k
            pos += need
        out.append(line)
        srcC = set(regs_of(toks[3])) if cls == 'mfma' else set()
        hist.append((pos, cls, mn, set(W), set(Rd), srcC))
        if mn == 's_nop': pos += int(toks[0]) + 1
        else: pos += 1
        hist = [h for h in hist if pos - h[0] <= 12]
    return out, total
```

```python
import sys, struct, math
sys.path.insert(0, 'exp')
from asmlib import *
import hz

def f2u(x): return struct.unpack('<I', struct.pack('<f', x))[0]
CS = math.log2(math.e) / math.sqrt(128.0)
C_POS = '0x%08x' % f2u(CS)
C_NEG = '0x%08x' % f2u(-CS)

WBASE = 98304
MF = 'v_mfma_f32_16x16x32_bf16'
S_X, S_K, S_V, S_WQ, S_WO, S_WS = 8, 12, 16, 20, 24, 28
S_OFF = 32
S_ST = 33
S_KH8192, S_KH6144, S_WQK, S_WOK = 34, 35, 36, 37
S_W, S_I, S_KH, S_B = 38, 39, 40, 41
S_T0, S_T1, S_T2, S_T3 = 42, 43, 44, 45
S_QB, S_SBW, S_SBP, S_STW, S_STP, S_OB = 46, 47, 48, 49, 50, 51
V_L16 = 0
V_DMA = 1
V_DUM = 7
V_AK = 8
V_AV = 12
V_AWO = 20
V_M = 22
V_T = 25
V_F = 32
V_S = 64
V_O = 160
V_XF = 160
V_PDMA = 184
V_AWQ = 192
V_AX = 196
A_Q = (0, 192)
A_L = 240
A_ONE = 252

def vr(n, c=1): return 'v%d' % n if c == 1 else 'v[%d:%d]' % (n, n + c - 1)
def ar(n, c=1): return 'a%d' % n if c == 1 else 'a[%d:%d]' % (n, n + c - 1)
def sr(n, c=1): return 's%d' % n if c == 1 else 's[%d:%d]' % (n, n + c - 1)

class Wave:
    def __init__(s, role, opt):
        s.role = role; s.opt = opt
        s.L = []; s.vm = []; s.vmdone = 0; s.ds = []; s.dsdone = 0
        s.fifo = []
        s.xq = []
        s.bias = {}
        s.nbar = 0
    def I(s, t): s.L.append('  ' + t)
    def C(s, t): s.L.append('  ; ' + t)
    def emit(s, it):
        k = it[0]
        if k == 'i': s.I(it[1])
        elif k == 'vm': s.I(it[1]); s.vm.append(it[2])
        elif k == 'ds':
            if callable(it[1]): it[1]()
            else: s.I(it[1]); s.ds.append(it[2])
        elif k == 'call': it[1]()
        else: raise ValueError(k)
    def vmop(s, t, tag): s.I(t); s.vm.append(tag)
    def dsop(s, t, tag): s.I(t); s.ds.append(tag)
    def flush_fifo_tag(s, tag):
        idx = [i for i, it in enumerate(s.fifo) if it[0] == 'vm' and it[2] == tag]
        if idx:
            for it in s.fifo[:idx[-1] + 1]: s.emit(it)
            s.fifo = s.fifo[idx[-1] + 1:]
    def wait_vm(s, tag):
        s.flush_fifo_tag(tag)
        idx = [i for i, t in enumerate(s.vm) if t == tag]
        assert idx, ('vm tag never issued', tag)
        i = idx[-1]
        if i < s.vmdone: return
        n = min(len(s.vm) - 1 - i, 63)
        s.I('s_waitcnt vmcnt(%d)' % n); s.vmdone = len(s.vm) - n
    def wait_ds(s, tag=None):
        if tag is None: i = len(s.ds) - 1
        else:
            idx = [i for i, t in enumerate(s.ds) if t == tag]
            assert idx, ('ds tag never issued', tag)
            i = idx[-1]
        if i < s.dsdone: return
        n = min(len(s.ds) - 1 - i, 15)
        s.I('s_waitcnt lgkmcnt(%d)' % n); s.dsdone = len(s.ds) - n
    def barrier(s):
        s.I('s_barrier'); s.nbar += 1
    def fill(s, cap):
        n = 0
        while n < cap and s.fifo:
            s.emit(s.fifo.pop(0)); n += 1
        return n
    def fillx(s, cap):
        n = 0
        while n < cap and s.xq:
            s.emit(s.xq.pop(0)); n += 1
        return n
    def drain(s):
        s.fill(10 ** 6)
    def off(s, reg, target):
        b = s.bias[reg]
        if not (0 <= target - b <= 65535):
            nb = target & ~0x3FFF
            d = nb - b
            if d >= 0: s.I('v_add_u32 v%d, 0x%x, v%d' % (reg, d, reg))
            else: s.I('v_subrev_u32 v%d, 0x%x, v%d' % (reg, -d, reg))
            s.bias[reg] = nb; b = nb
        return target - b
    def dma(s, srd, regs, m0base, m0imm, soffbase, soffimm, imms, tag, nt):
        it = []
        if m0base is None: it.append(('i', 's_mov_b32 m0, 0x%x' % m0imm))
        else: it.append(('i', 's_add_u32 m0, s%d, 0x%x' % (m0base, m0imm)))
        if soffbase is None: it.append(('i', 's_mov_b32 s%d, 0x%x' % (S_OFF, soffimm)))
        else: it.append(('i', 's_add_u32 s%d, s%d, 0x%x' % (S_OFF, soffbase, soffimm)))
        for r, im in zip(regs, imms):
            it.append(('vm', 'buffer_load_dwordx4 v%d, s[%d:%d], s%d offen offset:%d%s lds' % (r, srd, srd + 3, S_OFF, im, ' nt' if nt else ''), tag))
        s.fifo += it
    def push_x(s, c):
        b = V_PDMA
        s.dma(S_X, [b, b + 1, b + 2, b + 3], S_KH6144, 12288 * c, None, 128 * c, [0, 1024, 2048, 3072], ('x', c), False)
        s.dma(S_X, [b, b + 1], S_KH6144, 12288 * c + 4096, None, 128 * c + 32768, [0, 1024], ('x', c), False)
    def push_kv(s, n):
        if s.role != 0 or n >= 32: return
        isv = (n >> 3) & 1; hh = n >> 4; t = n & 7
        slot = 16384 * (n % 6)
        srd = S_V if isv else S_K
        regs = [V_DMA + 4, V_DMA + 5] * 2 if isv else [V_DMA + k for k in range(4)]
        for h in range(2):
            s.dma(srd, regs, S_KH8192, slot + 4096 * h, S_KH8192, hh * 131072 + t * 16384 + 4096 * h, [0, 1024, 2048, 3072], ('kv', n), True)
    def push_wq(s, t):
        if s.role != 1 or t >= 16: return
        slot = WBASE + 16384 * (t & 3)
        for h in range(2):
            regs = [V_PDMA + 4 * h + k for k in range(4)]
            s.dma(S_WQ, regs, S_KH8192, slot + 4096 * h, S_WQK, 262144 * t, [0, 1024, 2048, 3072], ('wq', t), False)
    def push_wo(s, m):
        if s.role != 1 or m >= 16: return
        slot = wo_slot(m)
        hh = m >> 3; t = m & 7
        for h in range(2):
            s.dma(S_WO, [V_DMA + k for k in range(4)], S_KH8192, slot + 4096 * h, S_WOK, hh * 131072 + t * 128 + 32768 * h, [0, 1024, 2048, 3072], ('wo', m), False)

def wo_slot(m):
    if m == 12: return 16384 * 4
    if m == 13: return 16384 * 5
    if m == 14: return 0
    if m == 15: return WBASE
    return WBASE + 16384 * (m & 3)

def rd_tr(w, areg, target, second, j, tag):
    items = []
    for h in range(2):
        def f(h=h):
            o = w.off(areg, target + second * h)
            w.dsop('ds_read_b64_tr_b16 %s, v%d offset:%d' % (vr(V_F + 4 * j + 2 * h, 2), areg, o), tag)
        items.append(('ds', f))
    return items
def rd_b128(w, dst, areg, target, tag):
    def f():
        o = w.off(areg, target)
        w.dsop('ds_read_b128 %s, v%d offset:%d' % (dst, areg, o), tag)
    return [('ds', f)]

def tile_wq(w, t):
    slot = WBASE + 16384 * (t & 3)
    return [rd_tr(w, V_AWQ + (j & 3), slot + (j >> 2) * 256, 2048, j, ('f', 'wq', t, j)) for j in range(8)]
def tile_k(w, n):
    slot = 16384 * (n % 6)
    return [rd_b128(w, vr(V_F + 4 * j, 4), V_AK + (j >> 1), slot + (j & 1) * 4096, ('f', 'kv', n, j)) for j in range(8)]
def tile_v(w, n):
    slot = 16384 * (n % 6)
    return [rd_tr(w, V_AV + j, slot, 4096, j, ('f', 'kv', n, j)) for j in range(8)]
def tile_wo(w, m):
    slot = wo_slot(m)
    return [rd_tr(w, V_AWO + (j & 1), slot + (j >> 1) * 4096, 512, j, ('f', 'wo', m, j)) for j in range(8)]
def xfrags(w, st):
    return [rd_b128(w, vr(V_XF + 12 * (st & 1) + 4 * qt, 4), V_AX + (st & 1), 12288 * (st >> 1) + 2048 * qt, ('xf', st))[0] for qt in range(3)]

def step(w, name, mf, curtag, btag, nxt, nxt_x, bar_vm, post_bar, xstart=4):
    w.C('---- ' + name)
    rq = []
    for k in range(len(mf)):
        if k == 0:
            if btag is not None: w.wait_ds(btag)
            w.wait_ds(curtag(1))
        elif k == 6: w.wait_ds(curtag(3))
        elif k == 12: w.wait_ds()
        w.I(mf[k])
        used = 0
        if k == 12:
            if bar_vm is not None: w.wait_vm(bar_vm)
            w.barrier()
            post_bar()
            if nxt_x: rq += [(12, it) for it in nxt_x]
            if nxt:
                for j in range(8):
                    rq += [(max(12, 3 * j + 2), it) for it in nxt[j]]
        cap = w.opt.get('cap', 2)
        while rq and rq[0][0] <= k and used < cap:
            w.emit(rq.pop(0)[1]); used += 1
        last = (k == len(mf) - 1)
        if last:
            while rq: w.emit(rq.pop(0)[1])
        if used < cap:
            if k >= xstart: used += w.fillx(cap - used)
        if used < cap:
            w.fill(cap - used)

def lane_setup(w):
    I = w.I
    T = 200
    l, c16, g, rp, cc = T, T + 1, T + 2, T + 3, T + 4
    t0, t1, t2 = T + 5, T + 6, T + 7
    I('v_and_b32 v%d, 63, v0' % l)
    I('v_and_b32 v%d, 15, v0' % c16)
    I('v_lshrrev_b32 v%d, 4, v%d' % (g, l))
    I('v_bfe_u32 v%d, v0, 2, 2' % rp)
    I('v_and_b32 v%d, 3, v0' % cc)
    I('v_lshlrev_b32 v0, 4, v%d' % l)
    I('v_xor_b32 v%d, v%d, v%d' % (t0, g, c16))
    I('v_lshlrev_b32 v%d, 4, v%d' % (t0, t0))
    I('v_lshl_add_u32 v%d, v%d, 8, v%d' % (t0, c16, t0))
    I('v_add_u32 v%d, s%d, v%d' % (V_AK, S_KH8192, t0))
    for k in range(1, 4): I('v_xor_b32 v%d, %d, v%d' % (V_AK + k, 64 * k, V_AK))
    I('v_lshl_add_u32 v%d, v%d, 2, v%d' % (t0, g, rp))
    I('v_and_b32 v%d, 7, v%d' % (t1, t0))
    I('s_lshl_b32 s%d, s%d, 2' % (S_T0, S_KH))
    I('v_xor_b32 v%d, s%d, v%d' % (t1, S_T0, t1))
    I('v_lshlrev_b32 v%d, 5, v%d' % (t1, t1))
    I('v_lshl_add_u32 v%d, v%d, 8, v%d' % (t1, t0, t1))
    I('v_lshl_add_u32 v%d, v%d, 3, v%d' % (t1, cc, t1))
    I('v_add_u32 v%d, s%d, v%d' % (V_AV, S_KH8192, t1))
    for k in range(1, 8): I('v_xor_b32 v%d, %d, v%d' % (V_AV + k, 32 * k, V_AV))
    I('v_and_b32 v%d, 1, v%d' % (t2, g))
    I('v_lshl_or_b32 v%d, v%d, 2, v%d' % (t1, t2, rp))
    I('v_xor_b32 v%d, s%d, v%d' % (t1, S_T0, t1))
    I('v_lshlrev_b32 v%d, 5, v%d' % (t1, t1))
    I('v_lshl_add_u32 v%d, v%d, 3, v%d' % (t0, g, rp))
    I('v_lshl_add_u32 v%d, v%d, 9, v%d' % (t1, t0, t1))
    I('v_lshl_add_u32 v%d, v%d, 3, v%d' % (t1, cc, t1))
    I('v_add_u32 v%d, 0x%x, v%d' % (V_AWQ, WBASE, t1))
    for k in range(1, 4): I('v_xor_b32 v%d, %d, v%d' % (V_AWQ + k, 32 * k, V_AWQ))
    I('v_lshrrev_b32 v%d, 1, v%d' % (t1, rp))
    I('v_lshl_or_b32 v%d, v%d, 1, v%d' % (t1, t2, t1))
    I('s_lshl_b32 s%d, s%d, 1' % (S_T1, S_KH))
    I('v_xor_b32 v%d, s%d, v%d' % (t1, S_T1, t1))
    I('v_lshlrev_b32 v%d, 5, v%d' % (t1, t1))
    I('v_lshl_add_u32 v%d, v%d, 7, v%d' % (t1, t0, t1))
    I('v_lshl_add_u32 v%d, v%d, 3, v%d' % (t1, cc, t1))
    I('v_add_u32 v%d, 0x%x, v%d' % (V_AWO, WBASE, t1))
    I('v_xor_b32 v%d, 32, v%d' % (V_AWO + 1, V_AWO))
    I('v_lshrrev_b32 v%d, 1, v%d' % (t1, c16))
    I('v_xor_b32 v%d, v%d, v%d' % (t1, g, t1))
    I('v_lshlrev_b32 v%d, 4, v%d' % (t1, t1))
    I('v_lshl_add_u32 v%d, v%d, 7, v%d' % (t1, c16, t1))
    I('s_mul_i32 s%d, s%d, 6144' % (S_T1, S_I))
    I('v_add_u32 v%d, s%d, v%d' % (V_AX, S_T1, t1))
    I('v_xor_b32 v%d, 64, v%d' % (V_AX + 1, V_AX))
    for k in range(4): w.bias[V_AK + k] = 0; w.bias[V_AWQ + k] = WBASE
    for k in range(8): w.bias[V_AV + k] = 0
    for k in range(2): w.bias[V_AWO + k] = WBASE; w.bias[V_AX + k] = 0
    I('v_mov_b32 v%d, 0x3f803f80' % t1)
    for k in range(4): I('v_accvgpr_write_b32 a%d, v%d' % (A_ONE + k, t1))
    return dict(l=l, c16=c16, g=g, rp=rp, cc=cc, t0=t0, t1=t1, t2=t2)

def dma_setup(w, R):
    I = w.I
    l, c16, g, t0, t1, t2 = R['l'], R['c16'], R['g'], R['t0'], R['t1'], R['t2']
    if w.role == 0:
        I('v_and_b32 v%d, 7, v%d' % (t0, l))
        I('v_xor_b32 v%d, v%d, v%d' % (t0, g, t0))
        I('v_lshlrev_b32 v%d, 4, v%d' % (t0, t0))
        I('v_lshrrev_b32 v%d, 3, v%d' % (t1, l))
        I('v_lshl_add_u32 v%d, v%d, 10, v%d' % (t0, t1, t0))
        I('s_mul_i32 s%d, s%d, 49152' % (S_T0, S_KH))
        I('v_add_u32 v%d, s%d, v%d' % (V_PDMA, S_T0, t0))
        for j in range(1, 4):
            if j & 1: I('v_xor_b32 v%d, 64, v%d' % (V_PDMA + j, V_PDMA))
            src = V_PDMA + j if j & 1 else V_PDMA
            I('v_add_u32 v%d, 0x%x, v%d' % (V_PDMA + j, j * 7168, src))
        tq, to = V_PDMA + 4, V_PDMA + 5
        I('v_lshrrev_b32 v%d, 2, v%d' % (t0, l))
        I('v_lshlrev_b32 v%d, 13, v%d' % (t0, t0))
        I('v_and_b32 v%d, 3, v%d' % (t1, l))
        I('v_lshl_add_u32 v%d, v%d, 7, v%d' % (t0, t1, t0))
        I('s_lshl_b32 s%d, s%d, 19' % (S_T0, S_B))
        I('s_lshl_b32 s%d, s%d, 18' % (S_T1, S_KH))
        I('s_add_u32 s%d, s%d, s%d' % (S_T0, S_T0, S_T1))
        I('v_add_u32 v%d, s%d, v%d' % (tq, S_T0, t0))
        I('s_lshl_b32 s%d, s%d, 15' % (S_T0, S_B))
        I('s_lshl_b32 s%d, s%d, 14' % (S_T1, S_KH))
        I('s_add_u32 s%d, s%d, s%d' % (S_T0, S_T0, S_T1))
        I('v_lshlrev_b32 v%d, 7, v%d' % (t0, l))
        I('v_add_u32 v%d, s%d, v%d' % (to, S_T0, t0))
        I('v_xor_b32 v%d, v%d, v%d' % (t0, g, c16))
        I('v_lshlrev_b32 v%d, 4, v%d' % (t0, t0))
        I('v_lshl_add_u32 v%d, v%d, 8, v%d' % (V_DMA, g, t0))
        for m in range(1, 4): I('v_xor_b32 v%d, %d, v%d' % (V_DMA + m, 64 * m, V_DMA))
        I('v_lshlrev_b32 v%d, 1, v%d' % (t0, g))
        I('v_xor_b32 v%d, v%d, v%d' % (t0, c16, t0))
        I('v_lshlrev_b32 v%d, 4, v%d' % (t0, t0))
        I('v_lshl_add_u32 v%d, v%d, 8, v%d' % (V_DMA + 4, g, t0))
        I('v_xor_b32 v%d, 0x80, v%d' % (V_DMA + 5, V_DMA + 4))
    else:
        I('v_lshrrev_b32 v%d, 5, v%d' % (t1, l))
        I('v_and_b32 v%d, 31, v%d' % (t0, l))
        I('v_lshlrev_b32 v%d, 1, v%d' % (t2, t1))
        I('v_xor_b32 v%d, v%d, v%d' % (t0, t2, t0))
        I('v_lshlrev_b32 v%d, 4, v%d' % (t0, t0))
        I('v_lshl_add_u32 v%d, v%d, 13, v%d' % (t0, t1, t0))
        for j in range(8):
            x = (4 * (j & 1) ^ 8 * (j >> 2)) * 16
            add = 2 * j * 8192 - (j & 3) * 1024
            if x: I('v_xor_b32 v%d, 0x%x, v%d' % (V_PDMA + j, x, t0))
            else: I('v_mov_b32 v%d, v%d' % (V_PDMA + j, t0))
            if add: I('v_add_u32 v%d, 0x%x, v%d' % (V_PDMA + j, add, V_PDMA + j))
        I('v_and_b32 v%d, 1, v%d' % (t1, g))
        I('v_lshlrev_b32 v%d, 1, v%d' % (t1, t1))
        I('v_and_b32 v%d, 7, v%d' % (t0, l))
        I('v_xor_b32 v%d, v%d, v%d' % (t0, t1, t0))
        I('v_lshlrev_b32 v%d, 4, v%d' % (t0, t0))
        I('v_lshrrev_b32 v%d, 3, v%d' % (t1, l))
        I('v_lshl_add_u32 v%d, v%d, 10, v%d' % (V_DMA, t1, t0))
        for m in range(1, 4):
            if m & 1: I('v_xor_b32 v%d, 64, v%d' % (V_DMA + m, V_DMA))
            src = V_DMA + m if m & 1 else V_DMA
            I('v_add_u32 v%d, 0x%x, v%d' % (V_DMA + m, m * 7168, src))

def sprinkle(w, instrs, every, cap=1):
    for k, t in enumerate(instrs):
        if isinstance(t, str): w.I(t)
        else: w.emit(t)
        if every and k % every == every - 1: w.fill(cap)

def softmax(w, hh, vtile):
    w.C('==== softmax head %d' % hh)
    S = lambda n, k: V_S + 8 * n + k
    ins = []
    for t in range(8):
        for qt in range(3):
            n = t * 3 + qt; m = V_M + qt
            if t == 0:
                ins.append('v_max3_f32 v%d, v%d, v%d, v%d' % (m, S(n, 0), S(n, 1), S(n, 2)))
                ins.append('v_max3_f32 v%d, v%d, v%d, v%d' % (m, m, S(n, 3), S(n, 4)))
                ins.append('v_max3_f32 v%d, v%d, v%d, v%d' % (m, m, S(n, 5), S(n, 6)))
                ins.append('v_max_f32 v%d, v%d, v%d' % (m, m, S(n, 7)))
            else:
                for k in range(0, 8, 2):
                    ins.append('v_max3_f32 v%d, v%d, v%d, v%d' % (m, m, S(n, k), S(n, k + 1)))
    T = V_T
    for sw in ('v_permlane32_swap_b32', 'v_permlane16_swap_b32'):
        for qt in range(3): ins.append('v_mov_b32 v%d, v%d' % (T + qt, V_M + qt))
        for qt in range(3): ins.append('%s v%d, v%d' % (sw, V_M + qt, T + qt))
        for qt in range(3): ins.append('v_max_f32 v%d, v%d, v%d' % (V_M + qt, V_M + qt, T + qt))
    for qt in range(3): ins.append('v_mul_f32 v%d, %s, v%d' % (V_M + qt, C_NEG, V_M + qt))
    sprinkle(w, ins, 6)
    nbar = w.opt.get('vbar_n', 18)
    rq = []
    for n in range(24):
        qt = n % 3
        if n == nbar:
            if w.role == 0: w.wait_vm(('kv', vtile))
            w.barrier()
            for grp in tile_v(w, vtile): rq += grp
        ins = []
        for k in range(8): ins.append('v_fmamk_f32 v%d, v%d, %s, v%d' % (S(n, k), S(n, k), C_POS, V_M + qt))
        for k in range(8): ins.append('v_exp_f32 v%d, v%d' % (S(n, k), S(n, k)))
        for k in range(4): ins.append('v_cvt_pk_bf16_f32 v%d, v%d, v%d' % (V_S + 4 * n + k, S(n, 2 * k), S(n, 2 * k + 1)))
        for k, t in enumerate(ins):
            w.I(t)
            if k % 5 == 4:
                if rq: w.emit(rq.pop(0))
                else: w.fill(1)
    while rq: w.emit(rq.pop(0))

def merge(w, hh):
    I = w.I
    w.C('==== merge head %d' % hh)
    P = 112
    aS, aR, aST, aSP = P, P + 1, P + 2, P + 3
    I('v_add_u32 v%d, s%d, v0' % (aS, S_SBW))
    I('v_add_u32 v%d, s%d, v0' % (aR, S_SBP))
    I('v_lshrrev_b32 v%d, 1, v0' % aSP)
    I('v_add_u32 v%d, s%d, v%d' % (aST, S_STW, aSP))
    I('v_add_u32 v%d, s%d, v%d' % (aSP, S_STP, aSP))
    for k in range(12):
        w.dsop('ds_write_b128 v%d, %s offset:%d' % (aS, vr(V_O + 48 + 4 * k, 4), 1024 * k), 'mw')
        if k % 3 == 2: w.fill(1)
    st = P + 4
    for qt in range(3):
        I('v_mov_b32 v%d, v%d' % (st + 2 * qt, V_M + qt))
        I('v_accvgpr_read_b32 v%d, a%d' % (st + 2 * qt + 1, A_L + 4 * qt))
    for qt in range(3):
        w.dsop('ds_write_b64 v%d, %s offset:%d' % (aST, vr(st + 2 * qt, 2), 512 * qt), 'mw')
    c16x, gx, aW, aB = P + 16, P + 17, P + 18, P + 22
    I('v_bfe_u32 v%d, v0, 4, 4' % c16x)
    I('v_lshrrev_b32 v%d, 8, v0' % gx)
    I('v_lshrrev_b32 v%d, 1, v%d' % (aW + 1, c16x))
    I('v_lshrrev_b32 v%d, 1, v%d' % (aW + 2, gx))
    I('v_xor_b32 v%d, v%d, v%d' % (aW + 2, aW + 1, aW + 2))
    I('v_lshlrev_b32 v%d, 4, v%d' % (aW + 2, aW + 2))
    I('v_lshl_add_u32 v%d, v%d, 7, v%d' % (aW, c16x, aW + 2))
    I('v_and_b32 v%d, 1, v%d' % (aW + 2, gx))
    I('v_lshl_add_u32 v%d, v%d, 3, v%d' % (aW, aW + 2, aW))
    I('v_add_u32 v%d, s%d, v%d' % (aW, S_SBP, aW))
    I('v_xor_b32 v%d, v%d, v%d' % (aB, gx, aW + 1))
    I('v_lshlrev_b32 v%d, 4, v%d' % (aB, aB))
    I('v_lshl_add_u32 v%d, v%d, 7, v%d' % (aB, c16x, aB))
    I('v_add_u32 v%d, s%d, v%d' % (aB, S_OB, aB))
    I('v_xor_b32 v%d, 64, v%d' % (aB + 1, aB))
    for k in range(1, 4): I('v_xor_b32 v%d, %d, v%d' % (aW + k, 32 * k, aW))
    w.wait_ds()
    w.barrier()
    for qt in range(3):
        w.dsop('ds_read_b64 %s, v%d offset:%d' % (vr(st + 6 + 2 * qt, 2), aSP, 512 * qt), ('ms', qt))
    RCV = 64
    for k in range(12):
        w.dsop('ds_read_b128 %s, v%d offset:%d' % (vr(RCV + 4 * k, 4), aR, 1024 * k), ('mr', k))
    w.fill(4)
    w.wait_ds(('ms', 2))
    fa, fb, tm = P + 24, P + 27, P + 30
    ins = []
    for qt in range(3): ins.append('v_min_f32 v%d, v%d, v%d' % (tm + qt, st + 2 * qt, st + 6 + 2 * qt))
    for qt in range(3): ins.append('v_sub_f32 v%d, v%d, v%d' % (fa + qt, tm + qt, st + 2 * qt))
    for qt in range(3): ins.append('v_sub_f32 v%d, v%d, v%d' % (fb + qt, tm + qt, st + 6 + 2 * qt))
    for qt in range(3): ins.append('v_exp_f32 v%d, v%d' % (fa + qt, fa + qt))
    for qt in range(3): ins.append('v_exp_f32 v%d, v%d' % (fb + qt, fb + qt))
    for qt in range(3): ins.append('v_mul_f32 v%d, v%d, v%d' % (tm + qt, st + 2 * qt + 1, fa + qt))
    for qt in range(3): ins.append('v_fmac_f32 v%d, v%d, v%d' % (tm + qt, st + 6 + 2 * qt + 1, fb + qt))
    for qt in range(3): ins.append('v_rcp_f32 v%d, v%d' % (tm + qt, tm + qt))
    for qt in range(3): ins.append('v_mul_f32 v%d, v%d, v%d' % (fa + qt, fa + qt, tm + qt))
    for qt in range(3): ins.append('v_mul_f32 v%d, v%d, v%d' % (fb + qt, fb + qt, tm + qt))
    for t in ins: I(t)
    for k in range(12):
        idx, qt = k // 3, k % 3
        o = V_O + 4 * k
        for r in range(4): I('v_mul_f32 v%d, v%d, v%d' % (o + r, o + r, fa + qt))
        w.wait_ds(('mr', k))
        for r in range(4): I('v_fmac_f32 v%d, v%d, v%d' % (o + r, RCV + 4 * k + r, fb + qt))
        I('v_cvt_pk_bf16_f32 v%d, v%d, v%d' % (o, o, o + 1))
        I('v_cvt_pk_bf16_f32 v%d, v%d, v%d' % (o + 1, o + 2, o + 3))
        w.dsop('ds_write_b64 v%d, %s offset:%d' % (aW + idx, vr(o, 2), 2048 * qt), 'mw2')
        if k % 2 == 1: w.fill(1)
    w.wait_ds()
    w.barrier()
    w.push_wo(3 + 8 * hh)
    for s_ in range(4):
        for qt in range(3):
            w.dsop('ds_read_b128 %s, v%d offset:%d' % (vr(V_S + (qt * 4 + s_) * 4, 4), aB + (s_ & 1), 2048 * qt + (12288 if s_ < 2 else 0)), ('ob', hh))
    w.fill(4)

def epi_items(t):
    T0 = 112; E = 136
    it = []
    def rd(qt):
        for u in range(2):
            for r in range(4):
                it.append(('i', 'v_accvgpr_read_b32 v%d, a%d' % (T0 + 8 * qt + 4 * u + r, (t * 6 + u * 3 + qt) * 4 + r)))
    def cv(qt):
        for k in range(4):
            it.append(('i', 'v_cvt_pk_bf16_f32 v%d, v%d, v%d' % (E + 4 * qt + k, T0 + 8 * qt + 2 * k, T0 + 8 * qt + 2 * k + 1)))
    def sw(qt):
        it.append(('i', 'v_permlane16_swap_b32 v%d, v%d' % (E + 4 * qt, E + 4 * qt + 2)))
        it.append(('i', 'v_permlane16_swap_b32 v%d, v%d' % (E + 4 * qt + 1, E + 4 * qt + 3)))
    def stq(qt):
        it.append(('vm', 'buffer_store_dwordx4 %s, v0, s[%d:%d], s%d offen offset:%d' % (vr(E + 4 * qt, 4), S_WS, S_WS + 3, S_ST, 1024 * qt), ('st', t)))
    it.append(('i', 's_mov_b32 s%d, %d' % (S_ST, 3072 * t)))
    rd(0); cv(0); rd(1); sw(0); cv(1); rd(2); stq(0); sw(1); cv(2); stq(1); it.append(('i', 's_nop 0')); sw(2); stq(2)
    return it

def dbg_dump(w, regs, slot):
    pass

def body(w):
    opt = w.opt
    role = w.role
    I = w.I
    R = lane_setup(w)
    dma_setup(w, R)
    if role == 0:
        w.push_x(0); w.drain()
        tq, to = V_PDMA + 4, V_PDMA + 5
        I('s_mov_b32 s%d, 0x20000' % S_T0)
        w.vmop('buffer_load_dword v%d, v%d, s[%d:%d], 0 offen' % (V_DUM, tq, S_WQ, S_WQ + 3), 'touch')
        w.vmop('buffer_load_dword v%d, v%d, s[%d:%d], s%d offen' % (V_DUM, tq, S_WQ, S_WQ + 3, S_T0), 'touch')
        for c in range(1, 8): w.push_x(c)
        w.drain()
        I('s_mov_b32 s%d, 0x2000' % S_T0)
        w.vmop('buffer_load_dword v%d, v%d, s[%d:%d], 0 offen' % (V_DUM, to, S_WO, S_WO + 3), 'touch')
        w.vmop('buffer_load_dword v%d, v%d, s[%d:%d], s%d offen' % (V_DUM, to, S_WO, S_WO + 3, S_T0), 'touch')
        w.wait_vm(('x', 0))
    else:
        for t in range(4): w.push_wq(t)
        w.drain()
        w.wait_vm(('wq', 0))
    w.barrier()
    for it in xfrags(w, 0): w.emit(it)
    for grp in tile_wq(w, 0):
        for it in grp: w.emit(it)
    kfree = {3: 0, 5: 1, 7: 2, 11: 3, 13: 4, 15: 5}
    for s_ in range(16):
        mf = []
        for j in range(8):
            for qt in range(3):
                d = vr(V_S + 4 * (j * 3 + qt), 4)
                mf.append('%s %s, %s, %s, %s' % (MF, d, vr(V_F + 4 * j, 4), vr(V_XF + 12 * (s_ & 1) + 4 * qt, 4), d if s_ else '0'))
        if s_ < 15:
            nxt = tile_wq(w, s_ + 1); nx = xfrags(w, s_ + 1)
            bv = ('wq', s_ + 1) if role == 1 else (('x', (s_ + 1) >> 1) if (s_ + 1) % 2 == 0 else None)
        else:
            nxt = tile_k(w, 0); nx = None
            bv = ('kv', 0) if role == 0 else None
        def pb(s_=s_):
            w.push_wq(s_ + 4)
            if s_ in kfree: w.push_kv(kfree[s_])
        step(w, 'P1 step %d' % s_, mf, lambda j, s_=s_: ('f', 'wq', s_, j), ('xf', s_), nxt, nx, bv, pb)
    w.C('==== Q exchange')
    T = 200
    c16, g, aW = T, T + 1, T + 4
    I('v_bfe_u32 v%d, v0, 4, 4' % c16)
    I('v_lshrrev_b32 v%d, 8, v0' % g)
    I('v_lshrrev_b32 v%d, 1, v%d' % (aW + 1, g))
    I('s_lshl_b32 s%d, s%d, 3' % (S_T0, S_KH))
    I('v_xor_b32 v%d, s%d, v%d' % (aW + 1, S_T0, aW + 1))
    I('v_xor_b32 v%d, v%d, v%d' % (aW + 1, c16, aW + 1))
    I('v_lshlrev_b32 v%d, 4, v%d' % (aW + 1, aW + 1))
    I('v_lshl_add_u32 v%d, v%d, 8, v%d' % (aW, c16, aW + 1))
    I('v_and_b32 v%d, 1, v%d' % (aW + 1, g))
    I('v_lshl_add_u32 v%d, v%d, 3, v%d' % (aW, aW + 1, aW))
    I('v_add_u32 v%d, s%d, v%d' % (aW, S_QB, aW))
    for k in range(1, 4): I('v_xor_b32 v%d, %d, v%d' % (aW + k, 32 * k, aW))
    aQ = T + 8
    I('s_sub_u32 s%d, s%d, s%d' % (S_T0, S_QB, S_KH8192))
    I('s_sub_u32 s%d, s%d, 0x%x' % (S_T0, S_T0, w.bias[V_AK]))
    for k in range(4):
        assert w.bias[V_AK + k] == w.bias[V_AK]
        I('v_add_u32 v%d, s%d, v%d' % (aQ + k, S_T0, V_AK + k))
    for j in range(8):
        hh, dt = j >> 2, j & 3
        for qt in range(3):
            o = V_S + 4 * (j * 3 + qt)
            I('v_cvt_pk_bf16_f32 v%d, v%d, v%d' % (o, o, o + 1))
            I('v_cvt_pk_bf16_f32 v%d, v%d, v%d' % (o + 1, o + 2, o + 3))
            w.dsop('ds_write_b64 v%d, %s offset:%d' % (aW + dt, vr(o, 2), hh * 24576 + qt * 4096), 'qw')
        w.fill(1)
    w.wait_ds()
    w.barrier()
    for hh in range(2):
        for s_ in range(4):
            for qt in range(3):
                w.dsop('ds_read_b128 %s, v%d offset:%d' % (ar(A_Q[hh] + (qt * 4 + s_) * 4, 4), aQ + s_, hh * 24576 + qt * 4096), ('q', hh))
    for hh in range(2):
        kb = 16 * hh; vb = kb + 8
        for t in range(8):
            n = kb + t
            mf = []
            for j in range(8):
                s_, u = j >> 1, j & 1
                for qt in range(3):
                    d = vr(V_S + 8 * (t * 3 + qt) + 4 * u, 4)
                    mf.append('%s %s, %s, %s, %s' % (MF, d, vr(V_F + 4 * j, 4), ar(A_Q[hh] + (qt * 4 + s_) * 4, 4), d if s_ else '0'))
            nxt = tile_k(w, n + 1) if t < 7 else None
            bv = ('kv', n + 1) if (t < 7 and role == 0) else None
            def pb(n=n, t=t, hh=hh):
                w.push_kv(n + 6)
                if hh == 0 and t == 0:
                    for m in range(3): w.push_wo(m)
            step(w, 'QK%d step %d' % (hh, t), mf, lambda j, n=n: ('f', 'kv', n, j), ('q', hh) if t == 0 else None, nxt, None, bv, pb)
        softmax(w, hh, vb)
        for t in range(8):
            n = vb + t
            mf = []
            for j in range(8):
                for qt in range(3):
                    d = vr(V_O + 4 * (j * 3 + qt), 4)
                    mf.append('%s %s, %s, %s, %s' % (MF, d, vr(V_F + 4 * j, 4), vr(V_S + 4 * (t * 3 + qt), 4), d if t else '0'))
            for qt in range(3):
                d = ar(A_L + 4 * qt, 4)
                mf.append('%s %s, %s, %s, %s' % (MF, d, ar(A_ONE, 4), vr(V_S + 4 * (t * 3 + qt), 4), d if t else '0'))
            m0 = 8 * hh
            nxt = tile_v(w, n + 1) if t < 7 else tile_wo(w, m0)
            bv = (('kv', n + 1) if role == 0 else None) if t < 7 else (('wo', m0) if role == 1 else None)
            def pb(n=n, t=t, hh=hh):
                if not (hh == 0 and n + 6 in (19, 20, 21)): w.push_kv(n + 6)
                if hh == 1 and t in (4, 5, 6): w.push_wo(12 + t - 4)
            step(w, 'PV%d step %d' % (hh, t), mf, lambda j, n=n: ('f', 'kv', n, j), None, nxt, None, bv, pb)
        merge(w, hh)
        for t in range(8):
            m = 8 * hh + t
            mf = []
            for j in range(8):
                s_, u = j >> 1, j & 1
                for qt in range(3):
                    d = ar((t * 6 + u * 3 + qt) * 4, 4)
                    mf.append('%s %s, %s, %s, %s' % (MF, d, vr(V_F + 4 * j, 4), vr(V_S + (qt * 4 + s_) * 4, 4), d if (hh or s_) else '0'))
            if t < 7:
                nxt = tile_wo(w, m + 1); bv = ('wo', m + 1) if role == 1 else None
            elif hh == 0:
                nxt = tile_k(w, 16); bv = ('kv', 16) if role == 0 else None
            else:
                nxt = None; bv = None
            def pb(m=m, t=t, hh=hh):
                if hh == 0:
                    if t == 0:
                        for n in (19, 20, 21): w.push_kv(n)
                    if m + 4 != 11: w.push_wo(m + 4)
                elif t == 0:
                    w.push_wo(15)
            if hh == 1 and t >= 1:
                if t == 1: w.drain()
                w.xq += epi_items(t - 1)
            step(w, 'OP%d step %d' % (hh, t), mf, lambda j, m=m: ('f', 'wo', m, j), ('ob', hh) if t == 0 else None, nxt, None, bv, pb)
            if w.xq: w.fillx(10 ** 6)
    I('s_nop 7')
    for it in epi_items(7): w.emit(it)
    assert not w.fifo and not w.xq
    I('s_endpgm')

def k1(a, opt):
    name = 'mha_fused_kernel'
    kernel_begin(a, name)
    a('''  s_cmp_ge_u32 s2, 256
  s_cbranch_scc1 K1_EXIT
  s_and_b32 s3, s2, 4
  s_mul_i32 s3, s3, 10
  s_add_u32 s4, s0, s3
  s_addc_u32 s5, s1, 0
  s_load_dwordx4 s[52:55], s[4:5], 0
  s_load_dwordx4 s[56:59], s[4:5], 16
  s_load_dwordx2 s[60:61], s[4:5], 32
  s_load_dwordx2 s[62:63], s[0:1], 96
  v_lshrrev_b32 v1, 6, v0
  s_lshr_b32 s3, s2, 3
  v_readfirstlane_b32 s%(W)d, v1
  s_and_b32 s%(B)d, s3, 7
  s_lshr_b32 s3, s3, 3
  s_and_b32 s6, s2, 3
  s_lshl_b32 s7, s6, 2
  s_add_u32 s7, s7, s3
  s_lshr_b32 s%(I)d, s%(W)d, 1
  s_and_b32 s%(KH)d, s%(W)d, 1
  s_lshl_b32 s%(KH8192)d, s%(KH)d, 13
  s_mul_i32 s%(KH6144)d, s%(KH)d, 6144
  s_lshl_b32 s%(WQK)d, s%(KH)d, 17
  s_lshl_b32 s%(WOK)d, s%(KH)d, 16
  s_mul_i32 s%(QB)d, s%(I)d, 12288
  s_add_u32 s%(QB)d, s%(QB)d, 98304
  s_mul_i32 s%(SBW)d, s%(W)d, 12288
  s_add_u32 s%(SBW)d, s%(SBW)d, 16384
  s_xor_b32 s3, s%(W)d, 1
  s_mul_i32 s%(SBP)d, s3, 12288
  s_add_u32 s%(SBP)d, s%(SBP)d, 16384
  s_mul_i32 s%(STW)d, s%(W)d, 1536
  s_add_u32 s%(STW)d, s%(STW)d, 147456
  s_mul_i32 s%(STP)d, s3, 1536
  s_add_u32 s%(STP)d, s%(STP)d, 147456
  s_mul_i32 s%(OB)d, s%(I)d, 24576
  s_add_u32 s%(OB)d, s%(OB)d, 16384
  s_waitcnt lgkmcnt(0)''' % dict(W=S_W, B=S_B, I=S_I, KH=S_KH, KH8192=S_KH8192, KH6144=S_KH6144, WQK=S_WQK, WOK=S_WOK,
                                QB=S_QB, SBW=S_SBW, SBP=S_SBP, STW=S_STW, STP=S_STP, OB=S_OB))
    a('''  s_mul_i32 s3, s%(B)d, 98304
  s_add_u32 s8, s52, s3
  s_addc_u32 s9, s53, 0
  s_mov_b32 s10, 98304
  s_mov_b32 s11, 0x20000
  s_lshl_b32 s3, s%(B)d, 22
  s_lshl_b32 s6, s7, 18
  s_add_u32 s3, s3, s6
  s_add_u32 s12, s54, s3
  s_addc_u32 s13, s55, 0
  s_mov_b32 s14, 0x40000
  s_mov_b32 s15, 0x20000
  s_add_u32 s16, s56, s3
  s_addc_u32 s17, s57, 0
  s_mov_b32 s18, 0x40000
  s_mov_b32 s19, 0x20000
  s_lshl_b32 s3, s7, 9
  s_add_u32 s20, s58, s3
  s_addc_u32 s21, s59, 0
  s_sub_u32 s22, 0x400000, s3
  s_mov_b32 s23, 0x20000
  s_add_u32 s24, s60, s6
  s_addc_u32 s25, s61, 0
  s_mov_b32 s26, 0x40000
  s_mov_b32 s27, 0x20000
  s_and_b32 s3, s2, 4
  s_lshl_b32 s3, s3, 1
  s_add_u32 s3, s3, s%(B)d
  s_lshl_b32 s3, s3, 4
  s_add_u32 s3, s3, s7
  s_lshl_b32 s3, s3, 2
  s_add_u32 s3, s3, s%(W)d
  s_mul_i32 s3, s3, 24576
  s_add_u32 s28, s62, s3
  s_addc_u32 s29, s63, 0
  s_mov_b32 s30, 24576
  s_mov_b32 s31, 0x20000
  s_cmp_eq_u32 s%(I)d, 0
  s_cbranch_scc0 K1_ROLE1''' % dict(B=S_B, W=S_W, I=S_I))
    tot = 0
    bars = []
    for role in range(2):
        w = Wave(role, opt)
        body(w)
        bars.append(w.nbar)
        why = []
        L, n = hz.fix(w.L, why)
        tot += n
        if opt.get('v'):
            for x in why: print('nop', role, x, file=sys.stderr)
        if role == 1: a.label('K1_ROLE1')
        for l in L: a(l)
    assert bars[0] == bars[1]
    a.label('K1_EXIT')
    a('  s_endpgm')
    print('K1 barriers', bars[0], 'nop states', tot, file=sys.stderr)
    return name

def k2(a, opt):
    name = 'mha_reduce_kernel'
    kernel_begin(a, name)
    L = []
    I = lambda t: L.append('  ' + t)
    I('s_cmp_ge_u32 s2, 384')
    I('s_cbranch_scc1 K2_EXIT')
    I('s_load_dwordx2 s[4:5], s[0:1], 96')
    I('s_load_dwordx2 s[6:7], s[0:1], 80')
    I('v_lshrrev_b32 v1, 6, v0')
    I('v_and_b32 v2, 63, v0')
    I('v_readfirstlane_b32 s16, v1')
    I('s_mul_i32 s17, s2, 2731')
    I('s_lshr_b32 s17, s17, 16')
    I('s_mul_i32 s18, s17, 24')
    I('s_sub_u32 s18, s2, s18')
    I('s_lshl_b32 s18, s18, 2')
    I('s_add_u32 s18, s18, s16')
    I('s_mul_i32 s19, s18, 2731')
    I('s_lshr_b32 s19, s19, 16')
    I('s_mul_i32 s20, s19, 24')
    I('s_sub_u32 s20, s18, s20')
    I('s_mul_i32 s21, s20, 21846')
    I('s_lshr_b32 s21, s21, 16')
    I('s_mul_i32 s22, s21, 3')
    I('s_sub_u32 s22, s20, s22')
    I('s_waitcnt lgkmcnt(0)')
    I('s_mul_i32 s3, s17, 1572864')
    I('s_lshl_b32 s23, s18, 10')
    I('s_add_u32 s3, s3, s23')
    I('s_add_u32 s8, s4, s3')
    I('s_addc_u32 s9, s5, 0')
    I('s_mov_b32 s10, %d' % (15 * 98304 + 1024))
    I('s_mov_b32 s11, 0x20000')
    I('v_lshlrev_b32 v3, 4, v2')
    for p in range(16):
        I('s_mov_b32 s24, %d' % (p * 98304))
        I('buffer_load_dwordx4 v[%d:%d], v3, s[8:11], s24 offen' % (8 + 4 * p, 11 + 4 * p))
    I('s_and_b32 s23, s17, 7')
    I('s_lshr_b32 s25, s17, 3')
    I('s_mul_i32 s23, s23, 96')
    I('s_lshr_b32 s26, s19, 1')
    I('s_mul_i32 s26, s26, 48')
    I('s_add_u32 s23, s23, s26')
    I('s_lshl_b32 s26, s22, 4')
    I('s_add_u32 s23, s23, s26')
    I('s_lshl_b32 s23, s23, 11')
    I('s_lshl_b32 s25, s25, 10')
    I('s_add_u32 s23, s23, s25')
    I('s_lshl_b32 s26, s21, 7')
    I('s_add_u32 s23, s23, s26')
    I('s_and_b32 s26, s19, 1')
    I('s_lshl_b32 s26, s26, 6')
    I('s_add_u32 s23, s23, s26')
    I('v_and_b32 v4, 15, v2')
    I('v_lshlrev_b32 v4, 11, v4')
    I('v_bfe_u32 v5, v2, 4, 1')
    I('v_lshl_add_u32 v4, v5, 5, v4')
    I('v_lshrrev_b32 v5, 5, v2')
    I('v_lshl_add_u32 v4, v5, 4, v4')
    I('s_mov_b32 s12, s6')
    I('s_mov_b32 s13, s7')
    I('s_mov_b32 s14, %d' % (8 * 96 * 1024 * 2))
    I('s_mov_b32 s15, 0x20000')
    I('s_mov_b32 s27, 0xffff0000')
    for p in range(16):
        I('s_waitcnt vmcnt(%d)' % (15 - p))
        for k in range(4):
            src = 8 + 4 * p + k
            if p == 0:
                I('v_lshlrev_b32 v%d, 16, v%d' % (80 + 2 * k, src))
                I('v_and_b32 v%d, s27, v%d' % (81 + 2 * k, src))
            else:
                I('v_lshlrev_b32 v6, 16, v%d' % src)
                I('v_and_b32 v7, s27, v%d' % src)
                I('v_add_f32 v%d, v%d, v6' % (80 + 2 * k, 80 + 2 * k))
                I('v_add_f32 v%d, v%d, v7' % (81 + 2 * k, 81 + 2 * k))
    for k in range(4): I('v_cvt_pk_bf16_f32 v%d, v%d, v%d' % (88 + k, 80 + 2 * k, 81 + 2 * k))
    I('buffer_store_dwordx4 v[88:91], v4, s[12:15], s23 offen')
    L2, n = hz.fix(L)
    for l in L2: a(l)
    a.label('K2_EXIT')
    a('  s_endpgm')
    return name

def generate(opt):
    a = Asm()
    n1 = k1(a, opt)
    n2 = k2(a, opt)
    return assemble_file([(n1, 256, 256, 163840), (n2, 384, 256, 0)], a.text(),
                         [kernel_desc(n1, 512, 256), kernel_desc(n2, 96, 96)])

if __name__ == '__main__':
    out = sys.argv[1]
    opt = {}
    for x in sys.argv[2:]:
        k, v = x.split('=')
        opt[k] = int(v)
    open(out, 'w').write(generate(opt))
```

```python
import sys, struct, math
sys.path.insert(0, 'exp')
from asmlib import *
import hz

def f2u(x): return struct.unpack('<I', struct.pack('<f', x))[0]
CS = math.log2(math.e) / math.sqrt(128.0)
C_POS = '0x%08x' % f2u(CS)
C_NEG = '0x%08x' % f2u(-CS)

WBASE = 98304
MF = 'v_mfma_f32_16x16x32_bf16'
S_X, S_K, S_V, S_WQ, S_WO, S_WS = 8, 12, 16, 20, 24, 28
S_OFF = 32
S_ST = 33
S_KH8192, S_KH6144, S_WQK, S_WOK = 34, 35, 36, 37
S_W, S_I, S_KH, S_B = 38, 39, 40, 41
S_T0, S_T1, S_T2, S_T3 = 42, 43, 44, 45
S_QB, S_SBW, S_SBP, S_STW, S_STP, S_OB = 46, 47, 48, 49, 50, 51
S_TCH = 96
S_PAIR = 97
S_ROT = 52
S_R = 60
S_WT = 61
V_L16 = 0
V_DMA = 1
V_DUM = 7
V_AK = 8
V_AV = 12
V_AWO = 20
V_M = 22
V_T = 25
V_TK = 28
V_F = 32
V_S = 64
V_O = 160
V_XF = 160
V_PDMA = 184
V_AWQ = 192
V_AX = 196
A_Q = (0, 192)
A_L = 240
A_ONE = 252

def vr(n, c=1): return 'v%d' % n if c == 1 else 'v[%d:%d]' % (n, n + c - 1)
def ar(n, c=1): return 'a%d' % n if c == 1 else 'a[%d:%d]' % (n, n + c - 1)
def sr(n, c=1): return 's%d' % n if c == 1 else 's[%d:%d]' % (n, n + c - 1)

class Wave:
    def __init__(s, role, opt):
        s.role = role; s.opt = opt
        s.L = []; s.vm = []; s.vmdone = 0; s.ds = []; s.dsdone = 0
        s.fifo = []
        s.xq = []
        s.bias = {}
        s.nbar = 0; s.nstamp = 0
    def I(s, t): s.L.append('  ' + t)
    def C(s, t): s.L.append('  ; ' + t)
    def emit(s, it):
        k = it[0]
        if k == 'i': s.I(it[1])
        elif k == 'vm':
            if not (s.opt.get('noload') and ' lds' in it[1]): s.I(it[1])
            s.vm.append(it[2])
        elif k == 'ds':
            if callable(it[1]): it[1]()
            else: s.I(it[1]); s.ds.append(it[2])
        elif k == 'call': it[1]()
        else: raise ValueError(k)
    def vmop(s, t, tag): s.I(t); s.vm.append(tag)
    def dsop(s, t, tag):
        skip = False
        if s.opt.get('nords') == 1 and t.startswith('ds_read'): skip = True
        if s.opt.get('nords') == 2 and t.startswith('ds_read_b64_tr'): skip = True
        if s.opt.get('nords') == 3 and t.startswith('ds_read_b128'): skip = True
        if s.opt.get('trb64') and t.startswith('ds_read_b64_tr'): t = t.replace('ds_read_b64_tr_b16', 'ds_read_b64')
        if not skip: s.I(t)
        s.ds.append(tag)
    def flush_fifo_tag(s, tag):
        idx = [i for i, it in enumerate(s.fifo) if it[0] == 'vm' and it[2] == tag]
        if idx:
            for it in s.fifo[:idx[-1] + 1]: s.emit(it)
            s.fifo = s.fifo[idx[-1] + 1:]
    def wait_vm(s, tag):
        s.flush_fifo_tag(tag)
        idx = [i for i, t in enumerate(s.vm) if t == tag]
        assert idx, ('vm tag never issued', tag)
        i = idx[-1]
        if i < s.vmdone: return
        n = min(len(s.vm) - 1 - i, 63)
        if not s.opt.get('nowait'): s.I('s_waitcnt vmcnt(%d)' % n)
        s.vmdone = len(s.vm) - n
    def wait_ds(s, tag=None):
        if tag is None: i = len(s.ds) - 1
        else:
            idx = [i for i, t in enumerate(s.ds) if t == tag]
            assert idx, ('ds tag never issued', tag)
            i = idx[-1]
        if i < s.dsdone: return
        n = min(len(s.ds) - 1 - i, 15)
        s.I('s_waitcnt lgkmcnt(%d)' % n); s.dsdone = len(s.ds) - n
    def stamp(s, cls=1):
        if s.opt.get('stamp') != cls and cls != 0: return
        if not s.opt.get('stamp'): return
        k = s.nstamp; s.nstamp += 1
        assert k < 16
        s.I('s_memtime s[%d:%d]' % (64 + 2 * k, 65 + 2 * k))
    def barrier(s):
        if not s.opt.get('nobar'): s.I('s_barrier')
        s.nbar += 1
    def fill(s, cap):
        n = 0
        while n < cap and s.fifo:
            s.emit(s.fifo.pop(0)); n += 1
        return n
    def fillx(s, cap):
        n = 0
        while n < cap and s.xq:
            s.emit(s.xq.pop(0)); n += 1
        return n
    def drain(s):
        s.fill(10 ** 6)
    def off(s, reg, target):
        b = s.bias[reg]
        if not (0 <= target - b <= 65535):
            nb = target & ~0x3FFF
            d = nb - b
            if d >= 0: s.I('v_add_u32 v%d, 0x%x, v%d' % (reg, d, reg))
            else: s.I('v_subrev_u32 v%d, 0x%x, v%d' % (reg, -d, reg))
            s.bias[reg] = nb; b = nb
        return target - b
    def dma(s, srd, regs, m0base, m0imm, soffbase, soffimm, imms, tag, nt):
        it = []
        if m0base is None: it.append(('i', 's_mov_b32 m0, 0x%x' % m0imm))
        else: it.append(('i', 's_add_u32 m0, s%d, 0x%x' % (m0base, m0imm)))
        if soffbase is None: it.append(('i', 's_mov_b32 s%d, 0x%x' % (S_OFF, soffimm)))
        else: it.append(('i', 's_add_u32 s%d, s%d, 0x%x' % (S_OFF, soffbase, soffimm)))
        for r, im in zip(regs, imms):
            it.append(('vm', 'buffer_load_dwordx4 v%d, s[%d:%d], s%d offen offset:%d%s lds' % (r, srd, srd + 3, S_OFF, im, ' nt' if nt else ''), tag))
        s.fifo += it
    def push_x(s, c):
        b = V_PDMA
        if s.opt.get('rot', 1):
            s.dma(S_X, [b, b + 1, b + 2, b + 3], S_KH6144, 12288 * c, S_ROT + c, 0, [0, 1024, 2048, 3072], ('x', c), False)
            s.dma(S_X, [b, b + 1], S_KH6144, 12288 * c + 4096, S_ROT + c, 32768, [0, 1024], ('x', c), False)
            return
        s.dma(S_X, [b, b + 1, b + 2, b + 3], S_KH6144, 12288 * c, None, 128 * c, [0, 1024, 2048, 3072], ('x', c), False)
        s.dma(S_X, [b, b + 1], S_KH6144, 12288 * c + 4096, None, 128 * c + 32768, [0, 1024], ('x', c), False)
    def push_kv(s, n):
        if s.role != 0 or n >= 32: return
        isv = (n >> 3) & 1; hh = n >> 4; t = n & 7
        slot = 16384 * (n % 6)
        srd = S_V if isv else S_K
        regs = [V_DMA + 4, V_DMA + 5] * 2 if isv else [V_DMA + k for k in range(4)]
        for h in range(2):
            s.dma(srd, regs, S_KH8192, slot + 4096 * h, S_KH8192, hh * 131072 + t * 16384 + 4096 * h, [0, 1024, 2048, 3072], ('kv', n), True)
    def push_touch(s, n):
        if s.role != 0 or n >= 32: return
        isv = (n >> 3) & 1; hh = n >> 4; t = n & 7
        srd = S_V if isv else S_K
        s.fifo.append(('i', 's_mov_b32 s%d, 0x%x' % (S_TCH, hh * 131072 + t * 16384)))
        s.fifo.append(('vm', 'buffer_load_dword v%d, v%d, s[%d:%d], s%d offen' % (V_DUM, V_TK, srd, srd + 3, S_TCH), ('tk', n)))
    def push_wq(s, t):
        if s.role != 1 or t >= 16: return
        slot = WBASE + 16384 * (t & 3)
        for h in range(2):
            regs = [V_PDMA + 4 * h + k for k in range(4)]
            if s.opt.get('rot', 1): s.dma(S_WQ, regs, S_KH8192, slot + 4096 * h, S_ROT + (t >> 1), 262144 * (t & 1), [0, 1024, 2048, 3072], ('wq', t), False)
            else: s.dma(S_WQ, regs, S_KH8192, slot + 4096 * h, S_WQK, 262144 * t, [0, 1024, 2048, 3072], ('wq', t), False)
    def push_wo(s, m):
        if s.role != 1 or m >= 16: return
        slot = wo_slot(m)
        hh = m >> 3; t = m & 7
        if s.opt.get('rotwo', 1):
            s.fifo.append(('i', 's_add_u32 s%d, s%d, %d' % (S_WT, S_B, t)))
            s.fifo.append(('i', 's_and_b32 s%d, s%d, 7' % (S_WT, S_WT)))
            s.fifo.append(('i', 's_lshl_b32 s%d, s%d, 7' % (S_WT, S_WT)))
            s.fifo.append(('i', 's_add_u32 s%d, s%d, s%d' % (S_WT, S_WT, S_WOK)))
            for h in range(2):
                s.dma(S_WO, [V_DMA + k for k in range(4)], S_KH8192, slot + 4096 * h, S_WT, hh * 131072 + 32768 * h, [0, 1024, 2048, 3072], ('wo', m), False)
            return
        for h in range(2):
            s.dma(S_WO, [V_DMA + k for k in range(4)], S_KH8192, slot + 4096 * h, S_WOK, hh * 131072 + t * 128 + 32768 * h, [0, 1024, 2048, 3072], ('wo', m), False)

def wo_slot(m):
    if m == 12: return 16384 * 4
    if m == 13: return 16384 * 5
    if m == 14: return 0
    if m == 15: return WBASE
    return WBASE + 16384 * (m & 3)

def rd_tr(w, areg, target, second, j, tag):
    items = []
    for h in range(2):
        def f(h=h):
            o = w.off(areg, target + second * h)
            w.dsop('ds_read_b64_tr_b16 %s, v%d offset:%d' % (vr(V_F + 4 * j + 2 * h, 2), areg, o), tag)
        items.append(('ds', f))
    return items
def rd_b128(w, dst, areg, target, tag):
    def f():
        o = w.off(areg, target)
        w.dsop('ds_read_b128 %s, v%d offset:%d' % (dst, areg, o), tag)
    return [('ds', f)]

def tile_wq(w, t):
    slot = WBASE + 16384 * (t & 3)
    return [rd_tr(w, V_AWQ + (j & 3), slot + (j >> 2) * 256, 2048, j, ('f', 'wq', t, j)) for j in range(8)]
def tile_k(w, n):
    slot = 16384 * (n % 6)
    return [rd_b128(w, vr(V_F + 4 * j, 4), V_AK + (j >> 1), slot + (j & 1) * 4096, ('f', 'kv', n, j)) for j in range(8)]
def tile_v(w, n):
    slot = 16384 * (n % 6)
    return [rd_tr(w, V_AV + j, slot, 4096, j, ('f', 'kv', n, j)) for j in range(8)]
def tile_wo(w, m):
    slot = wo_slot(m)
    return [rd_tr(w, V_AWO + (j & 1), slot + (j >> 1) * 4096, 512, j, ('f', 'wo', m, j)) for j in range(8)]
def xfrags(w, st):
    return [rd_b128(w, vr(V_XF + 12 * (st & 1) + 4 * qt, 4), V_AX + (st & 1), 12288 * (st >> 1) + 2048 * qt, ('xf', st))[0] for qt in range(3)]

def step(w, name, mf, curtag, btag, nxt, nxt_x, bar_vm, post_bar, xstart=4):
    w.C('---- ' + name)
    sc = w.opt.get('stamp', 0)
    if sc == 2 and name.startswith('P1') and name != 'P1 step 0': w.stamp(2)
    if sc == 3 and (name.startswith('QK0') or name.startswith('PV0')) and not name.endswith('step 0') : w.stamp(3)
    if sc == 4 and (name.startswith('QK1') or name.startswith('OP0')) and not name.endswith('step 0') : w.stamp(4)
    rq = []
    for k in range(len(mf)):
        if k == 0:
            if btag is not None: w.wait_ds(btag)
            w.wait_ds(curtag(1))
        elif k == 6: w.wait_ds(curtag(3))
        elif k == 12: w.wait_ds()
        w.I(mf[k])
        used = 0
        if k == 12:
            if bar_vm is not None: w.wait_vm(bar_vm)
            w.barrier()
            post_bar()
            if nxt_x: rq += [(12, it) for it in nxt_x]
            if nxt:
                for j in range(8):
                    rq += [(max(12, 3 * j + 2), it) for it in nxt[j]]
        cap = w.opt.get('cap', 2)
        while rq and rq[0][0] <= k and used < cap:
            w.emit(rq.pop(0)[1]); used += 1
        last = (k == len(mf) - 1)
        if last:
            while rq: w.emit(rq.pop(0)[1])
        if used < cap:
            if k >= xstart: used += w.fillx(cap - used)
        if used < cap:
            w.fill(cap - used)

def lane_setup(w):
    I = w.I
    T = 200
    l, c16, g, rp, cc = T, T + 1, T + 2, T + 3, T + 4
    t0, t1, t2 = T + 5, T + 6, T + 7
    I('v_and_b32 v%d, 63, v0' % l)
    I('v_and_b32 v%d, 15, v0' % c16)
    I('v_lshrrev_b32 v%d, 4, v%d' % (g, l))
    I('v_bfe_u32 v%d, v0, 2, 2' % rp)
    I('v_and_b32 v%d, 3, v0' % cc)
    I('v_lshlrev_b32 v0, 4, v%d' % l)
    I('v_xor_b32 v%d, v%d, v%d' % (t0, g, c16))
    I('v_lshlrev_b32 v%d, 4, v%d' % (t0, t0))
    I('v_lshl_add_u32 v%d, v%d, 8, v%d' % (t0, c16, t0))
    I('v_add_u32 v%d, s%d, v%d' % (V_AK, S_KH8192, t0))
    for k in range(1, 4): I('v_xor_b32 v%d, %d, v%d' % (V_AK + k, 64 * k, V_AK))
    I('v_lshl_add_u32 v%d, v%d, 2, v%d' % (t0, g, rp))
    I('v_and_b32 v%d, 7, v%d' % (t1, t0))
    I('s_lshl_b32 s%d, s%d, 2' % (S_T0, S_KH))
    I('v_xor_b32 v%d, s%d, v%d' % (t1, S_T0, t1))
    I('v_lshlrev_b32 v%d, 5, v%d' % (t1, t1))
    I('v_lshl_add_u32 v%d, v%d, 8, v%d' % (t1, t0, t1))
    I('v_lshl_add_u32 v%d, v%d, 3, v%d' % (t1, cc, t1))
    I('v_add_u32 v%d, s%d, v%d' % (V_AV, S_KH8192, t1))
    for k in range(1, 8): I('v_xor_b32 v%d, %d, v%d' % (V_AV + k, 32 * k, V_AV))
    I('v_and_b32 v%d, 1, v%d' % (t2, g))
    I('v_lshl_or_b32 v%d, v%d, 2, v%d' % (t1, t2, rp))
    I('v_xor_b32 v%d, s%d, v%d' % (t1, S_T0, t1))
    I('v_lshlrev_b32 v%d, 5, v%d' % (t1, t1))
    I('v_lshl_add_u32 v%d, v%d, 3, v%d' % (t0, g, rp))
    I('v_lshl_add_u32 v%d, v%d, 9, v%d' % (t1, t0, t1))
    I('v_lshl_add_u32 v%d, v%d, 3, v%d' % (t1, cc, t1))
    I('v_add_u32 v%d, 0x%x, v%d' % (V_AWQ, WBASE, t1))
    for k in range(1, 4): I('v_xor_b32 v%d, %d, v%d' % (V_AWQ + k, 32 * k, V_AWQ))
    I('v_lshrrev_b32 v%d, 1, v%d' % (t1, rp))
    I('v_lshl_or_b32 v%d, v%d, 1, v%d' % (t1, t2, t1))
    I('s_lshl_b32 s%d, s%d, 1' % (S_T1, S_KH))
    I('v_xor_b32 v%d, s%d, v%d' % (t1, S_T1, t1))
    I('v_lshlrev_b32 v%d, 5, v%d' % (t1, t1))
    I('v_lshl_add_u32 v%d, v%d, 7, v%d' % (t1, t0, t1))
    I('v_lshl_add_u32 v%d, v%d, 3, v%d' % (t1, cc, t1))
    I('v_add_u32 v%d, 0x%x, v%d' % (V_AWO, WBASE, t1))
    I('v_xor_b32 v%d, 32, v%d' % (V_AWO + 1, V_AWO))
    I('v_lshrrev_b32 v%d, 1, v%d' % (t1, c16))
    I('v_xor_b32 v%d, v%d, v%d' % (t1, g, t1))
    I('v_lshlrev_b32 v%d, 4, v%d' % (t1, t1))
    I('v_lshl_add_u32 v%d, v%d, 7, v%d' % (t1, c16, t1))
    I('s_mul_i32 s%d, s%d, 6144' % (S_T1, S_I))
    I('v_add_u32 v%d, s%d, v%d' % (V_AX, S_T1, t1))
    I('v_xor_b32 v%d, 64, v%d' % (V_AX + 1, V_AX))
    for k in range(4): w.bias[V_AK + k] = 0; w.bias[V_AWQ + k] = WBASE
    for k in range(8): w.bias[V_AV + k] = 0
    for k in range(2): w.bias[V_AWO + k] = WBASE; w.bias[V_AX + k] = 0
    I('v_mov_b32 v%d, 0x3f803f80' % t1)
    for k in range(4): I('v_accvgpr_write_b32 a%d, v%d' % (A_ONE + k, t1))
    return dict(l=l, c16=c16, g=g, rp=rp, cc=cc, t0=t0, t1=t1, t2=t2)

def dma_setup(w, R):
    I = w.I
    l, c16, g, t0, t1, t2 = R['l'], R['c16'], R['g'], R['t0'], R['t1'], R['t2']
    if w.role == 0:
        I('v_and_b32 v%d, 7, v%d' % (t0, l))
        I('v_xor_b32 v%d, v%d, v%d' % (t0, g, t0))
        I('v_lshlrev_b32 v%d, 4, v%d' % (t0, t0))
        I('v_lshrrev_b32 v%d, 3, v%d' % (t1, l))
        I('v_lshl_add_u32 v%d, v%d, 10, v%d' % (t0, t1, t0))
        I('s_mul_i32 s%d, s%d, 49152' % (S_T0, S_KH))
        I('v_add_u32 v%d, s%d, v%d' % (V_PDMA, S_T0, t0))
        for j in range(1, 4):
            if j & 1: I('v_xor_b32 v%d, 64, v%d' % (V_PDMA + j, V_PDMA))
            src = V_PDMA + j if j & 1 else V_PDMA
            I('v_add_u32 v%d, 0x%x, v%d' % (V_PDMA + j, j * 7168, src))
        tq, to = V_PDMA + 4, V_PDMA + 5
        I('v_lshrrev_b32 v%d, 2, v%d' % (t0, l))
        I('v_lshlrev_b32 v%d, 13, v%d' % (t0, t0))
        I('v_and_b32 v%d, 3, v%d' % (t1, l))
        I('v_lshl_add_u32 v%d, v%d, 7, v%d' % (t0, t1, t0))
        I('s_lshl_b32 s%d, s%d, 19' % (S_T0, S_B))
        I('s_lshl_b32 s%d, s%d, 18' % (S_T1, S_KH))
        I('s_add_u32 s%d, s%d, s%d' % (S_T0, S_T0, S_T1))
        I('v_add_u32 v%d, s%d, v%d' % (tq, S_T0, t0))
        I('s_lshl_b32 s%d, s%d, 15' % (S_T0, S_B))
        I('s_lshl_b32 s%d, s%d, 14' % (S_T1, S_KH))
        I('s_add_u32 s%d, s%d, s%d' % (S_T0, S_T0, S_T1))
        I('v_lshlrev_b32 v%d, 7, v%d' % (t0, l))
        I('v_add_u32 v%d, s%d, v%d' % (to, S_T0, t0))
        I('v_lshlrev_b32 v%d, 7, v%d' % (t0, l))
        I('v_add_u32 v%d, s%d, v%d' % (V_TK, S_KH8192, t0))
        I('s_lshl_b32 s%d, s%d, 1' % (S_T0, S_PAIR))
        I('s_add_u32 s%d, s%d, s%d' % (S_T0, S_T0, S_KH))
        I('s_mul_i32 s%d, s%d, 12288' % (S_T0, S_T0))
        I('v_add_u32 v%d, s%d, v%d' % (V_PDMA + 6, S_T0, t0))
        I('v_xor_b32 v%d, v%d, v%d' % (t0, g, c16))
        I('v_lshlrev_b32 v%d, 4, v%d' % (t0, t0))
        I('v_lshl_add_u32 v%d, v%d, 8, v%d' % (V_DMA, g, t0))
        for m in range(1, 4): I('v_xor_b32 v%d, %d, v%d' % (V_DMA + m, 64 * m, V_DMA))
        I('v_lshlrev_b32 v%d, 1, v%d' % (t0, g))
        I('v_xor_b32 v%d, v%d, v%d' % (t0, c16, t0))
        I('v_lshlrev_b32 v%d, 4, v%d' % (t0, t0))
        I('v_lshl_add_u32 v%d, v%d, 8, v%d' % (V_DMA + 4, g, t0))
        I('v_xor_b32 v%d, 0x80, v%d' % (V_DMA + 5, V_DMA + 4))
    else:
        I('v_lshrrev_b32 v%d, 5, v%d' % (t1, l))
        I('v_and_b32 v%d, 31, v%d' % (t0, l))
        I('v_lshlrev_b32 v%d, 1, v%d' % (t2, t1))
        I('v_xor_b32 v%d, v%d, v%d' % (t0, t2, t0))
        I('v_lshlrev_b32 v%d, 4, v%d' % (t0, t0))
        I('v_lshl_add_u32 v%d, v%d, 13, v%d' % (t0, t1, t0))
        for j in range(8):
            x = (4 * (j & 1) ^ 8 * (j >> 2)) * 16
            add = 2 * j * 8192 - (j & 3) * 1024
            if x: I('v_xor_b32 v%d, 0x%x, v%d' % (V_PDMA + j, x, t0))
            else: I('v_mov_b32 v%d, v%d' % (V_PDMA + j, t0))
            if add: I('v_add_u32 v%d, 0x%x, v%d' % (V_PDMA + j, add, V_PDMA + j))
        I('v_and_b32 v%d, 1, v%d' % (t1, g))
        I('v_lshlrev_b32 v%d, 1, v%d' % (t1, t1))
        I('v_and_b32 v%d, 7, v%d' % (t0, l))
        I('v_xor_b32 v%d, v%d, v%d' % (t0, t1, t0))
        I('v_lshlrev_b32 v%d, 4, v%d' % (t0, t0))
        I('v_lshrrev_b32 v%d, 3, v%d' % (t1, l))
        I('v_lshl_add_u32 v%d, v%d, 10, v%d' % (V_DMA, t1, t0))
        for m in range(1, 4):
            if m & 1: I('v_xor_b32 v%d, 64, v%d' % (V_DMA + m, V_DMA))
            src = V_DMA + m if m & 1 else V_DMA
            I('v_add_u32 v%d, 0x%x, v%d' % (V_DMA + m, m * 7168, src))

def sprinkle(w, instrs, every, cap=1):
    for k, t in enumerate(instrs):
        if isinstance(t, str): w.I(t)
        else: w.emit(t)
        if every and k % every == every - 1: w.fill(cap)

def softmax(w, hh, vtile):
    w.C('==== softmax head %d' % hh)
    S = lambda n, k: V_S + 8 * n + k
    ins = []
    for t in range(8):
        for qt in range(3):
            n = t * 3 + qt; m = V_M + qt
            if t == 0:
                ins.append('v_max3_f32 v%d, v%d, v%d, v%d' % (m, S(n, 0), S(n, 1), S(n, 2)))
                ins.append('v_max3_f32 v%d, v%d, v%d, v%d' % (m, m, S(n, 3), S(n, 4)))
                ins.append('v_max3_f32 v%d, v%d, v%d, v%d' % (m, m, S(n, 5), S(n, 6)))
                ins.append('v_max_f32 v%d, v%d, v%d' % (m, m, S(n, 7)))
            else:
                for k in range(0, 8, 2):
                    ins.append('v_max3_f32 v%d, v%d, v%d, v%d' % (m, m, S(n, k), S(n, k + 1)))
    T = V_T
    for sw in ('v_permlane32_swap_b32', 'v_permlane16_swap_b32'):
        for qt in range(3): ins.append('v_mov_b32 v%d, v%d' % (T + qt, V_M + qt))
        for qt in range(3): ins.append('%s v%d, v%d' % (sw, V_M + qt, T + qt))
        for qt in range(3): ins.append('v_max_f32 v%d, v%d, v%d' % (V_M + qt, V_M + qt, T + qt))
    for qt in range(3): ins.append('v_mul_f32 v%d, %s, v%d' % (V_M + qt, C_NEG, V_M + qt))
    sprinkle(w, ins, 6)
    nbar = w.opt.get('vbar_n', 18)
    rq = []
    for n in range(24):
        qt = n % 3
        if n == nbar:
            if w.role == 0: w.wait_vm(('kv', vtile))
            w.barrier()
            for grp in tile_v(w, vtile): rq += grp
        ins = []
        for k in range(8): ins.append('v_fmamk_f32 v%d, v%d, %s, v%d' % (S(n, k), S(n, k), C_POS, V_M + qt))
        for k in range(8): ins.append('v_exp_f32 v%d, v%d' % (S(n, k), S(n, k)))
        for k in range(4): ins.append('v_cvt_pk_bf16_f32 v%d, v%d, v%d' % (V_S + 4 * n + k, S(n, 2 * k), S(n, 2 * k + 1)))
        for k, t in enumerate(ins):
            w.I(t)
            if k % 5 == 4:
                if rq: w.emit(rq.pop(0))
                else: w.fill(1)
    while rq: w.emit(rq.pop(0))

def merge(w, hh):
    I = w.I
    w.C('==== merge head %d' % hh)
    P = 112
    aS, aR, aST, aSP = P, P + 1, P + 2, P + 3
    I('v_add_u32 v%d, s%d, v0' % (aS, S_SBW))
    I('v_add_u32 v%d, s%d, v0' % (aR, S_SBP))
    I('v_lshrrev_b32 v%d, 1, v0' % aSP)
    I('v_add_u32 v%d, s%d, v%d' % (aST, S_STW, aSP))
    I('v_add_u32 v%d, s%d, v%d' % (aSP, S_STP, aSP))
    for k in range(12):
        w.dsop('ds_write_b128 v%d, %s offset:%d' % (aS, vr(V_O + 48 + 4 * k, 4), 1024 * k), 'mw')
        if k % 3 == 2: w.fill(1)
    st = P + 4
    for qt in range(3):
        I('v_mov_b32 v%d, v%d' % (st + 2 * qt, V_M + qt))
        I('v_accvgpr_read_b32 v%d, a%d' % (st + 2 * qt + 1, A_L + 4 * qt))
    for qt in range(3):
        w.dsop('ds_write_b64 v%d, %s offset:%d' % (aST, vr(st + 2 * qt, 2), 512 * qt), 'mw')
    c16x, gx, aW, aB = P + 16, P + 17, P + 18, P + 22
    I('v_bfe_u32 v%d, v0, 4, 4' % c16x)
    I('v_lshrrev_b32 v%d, 8, v0' % gx)
    I('v_lshrrev_b32 v%d, 1, v%d' % (aW + 1, c16x))
    I('v_lshrrev_b32 v%d, 1, v%d' % (aW + 2, gx))
    I('v_xor_b32 v%d, v%d, v%d' % (aW + 2, aW + 1, aW + 2))
    I('v_lshlrev_b32 v%d, 4, v%d' % (aW + 2, aW + 2))
    I('v_lshl_add_u32 v%d, v%d, 7, v%d' % (aW, c16x, aW + 2))
    I('v_and_b32 v%d, 1, v%d' % (aW + 2, gx))
    I('v_lshl_add_u32 v%d, v%d, 3, v%d' % (aW, aW + 2, aW))
    I('v_add_u32 v%d, s%d, v%d' % (aW, S_SBP, aW))
    I('v_xor_b32 v%d, v%d, v%d' % (aB, gx, aW + 1))
    I('v_lshlrev_b32 v%d, 4, v%d' % (aB, aB))
    I('v_lshl_add_u32 v%d, v%d, 7, v%d' % (aB, c16x, aB))
    I('v_add_u32 v%d, s%d, v%d' % (aB, S_OB, aB))
    I('v_xor_b32 v%d, 64, v%d' % (aB + 1, aB))
    for k in range(1, 4): I('v_xor_b32 v%d, %d, v%d' % (aW + k, 32 * k, aW))
    w.wait_ds()
    w.barrier()
    for qt in range(3):
        w.dsop('ds_read_b64 %s, v%d offset:%d' % (vr(st + 6 + 2 * qt, 2), aSP, 512 * qt), ('ms', qt))
    RCV = 64
    for k in range(12):
        w.dsop('ds_read_b128 %s, v%d offset:%d' % (vr(RCV + 4 * k, 4), aR, 1024 * k), ('mr', k))
    w.fill(4)
    w.wait_ds(('ms', 2))
    fa, fb, tm = P + 24, P + 27, P + 30
    ins = []
    for qt in range(3): ins.append('v_min_f32 v%d, v%d, v%d' % (tm + qt, st + 2 * qt, st + 6 + 2 * qt))
    for qt in range(3): ins.append('v_sub_f32 v%d, v%d, v%d' % (fa + qt, tm + qt, st + 2 * qt))
    for qt in range(3): ins.append('v_sub_f32 v%d, v%d, v%d' % (fb + qt, tm + qt, st + 6 + 2 * qt))
    for qt in range(3): ins.append('v_exp_f32 v%d, v%d' % (fa + qt, fa + qt))
    for qt in range(3): ins.append('v_exp_f32 v%d, v%d' % (fb + qt, fb + qt))
    for qt in range(3): ins.append('v_mul_f32 v%d, v%d, v%d' % (tm + qt, st + 2 * qt + 1, fa + qt))
    for qt in range(3): ins.append('v_fmac_f32 v%d, v%d, v%d' % (tm + qt, st + 6 + 2 * qt + 1, fb + qt))
    for qt in range(3): ins.append('v_rcp_f32 v%d, v%d' % (tm + qt, tm + qt))
    for qt in range(3): ins.append('v_mul_f32 v%d, v%d, v%d' % (fa + qt, fa + qt, tm + qt))
    for qt in range(3): ins.append('v_mul_f32 v%d, v%d, v%d' % (fb + qt, fb + qt, tm + qt))
    for t in ins: I(t)
    for k in range(12):
        idx, qt = k // 3, k % 3
        o = V_O + 4 * k
        for r in range(4): I('v_mul_f32 v%d, v%d, v%d' % (o + r, o + r, fa + qt))
        w.wait_ds(('mr', k))
        for r in range(4): I('v_fmac_f32 v%d, v%d, v%d' % (o + r, RCV + 4 * k + r, fb + qt))
        I('v_cvt_pk_bf16_f32 v%d, v%d, v%d' % (o, o, o + 1))
        I('v_cvt_pk_bf16_f32 v%d, v%d, v%d' % (o + 1, o + 2, o + 3))
        w.dsop('ds_write_b64 v%d, %s offset:%d' % (aW + idx, vr(o, 2), 2048 * qt), 'mw2')
        if k % 2 == 1: w.fill(1)
    w.wait_ds()
    w.barrier()
    w.push_wo(3 + 8 * hh)
    for s_ in range(4):
        for qt in range(3):
            w.dsop('ds_read_b128 %s, v%d offset:%d' % (vr(V_S + (qt * 4 + s_) * 4, 4), aB + (s_ & 1), 2048 * qt + (12288 if s_ < 2 else 0)), ('ob', hh))
    w.fill(4)

def epi_items(t, opt):
    T0 = 112; E = 136
    it = []
    def rd(qt):
        for u in range(2):
            for r in range(4):
                it.append(('i', 'v_accvgpr_read_b32 v%d, a%d' % (T0 + 8 * qt + 4 * u + r, (t * 6 + u * 3 + qt) * 4 + r)))
    def cv(qt):
        for k in range(4):
            it.append(('i', 'v_cvt_pk_bf16_f32 v%d, v%d, v%d' % (E + 4 * qt + k, T0 + 8 * qt + 2 * k, T0 + 8 * qt + 2 * k + 1)))
    def sw(qt):
        it.append(('i', 'v_permlane16_swap_b32 v%d, v%d' % (E + 4 * qt, E + 4 * qt + 2)))
        it.append(('i', 'v_permlane16_swap_b32 v%d, v%d' % (E + 4 * qt + 1, E + 4 * qt + 3)))
    def stq(qt):
        it.append(('vm', 'buffer_store_dwordx4 %s, v0, s[%d:%d], s%d offen offset:%d' % (vr(E + 4 * qt, 4), S_WS, S_WS + 3, S_ST, 1024 * qt), ('st', t)))
    if opt.get('rotwo', 1):
        it.append(('i', 's_add_u32 s%d, s%d, %d' % (S_ST, S_B, t)))
        it.append(('i', 's_and_b32 s%d, s%d, 7' % (S_ST, S_ST)))
        it.append(('i', 's_mul_i32 s%d, s%d, 3072' % (S_ST, S_ST)))
    else: it.append(('i', 's_mov_b32 s%d, %d' % (S_ST, 3072 * t)))
    rd(0); cv(0); rd(1); sw(0); cv(1); rd(2); stq(0); sw(1); cv(2); stq(1); it.append(('i', 's_nop 0')); sw(2); stq(2)
    return it

def touch_schedule(opt):
    k = opt.get('kts', 0)
    d = {}
    if k == 1:
        n = opt.get('ktp', 0)
        for st in (1, 3, 5, 7, 9, 11, 13, 15):
            if n < 10: d[('P1', st)] = [n]; n += 1
    return d

def dbg_dump(w, regs, slot):
    pass

def body(w):
    opt = w.opt
    role = w.role
    I = w.I
    w.stamp(0)
    R = lane_setup(w)
    dma_setup(w, R)
    tq, to, tx = V_PDMA + 4, V_PDMA + 5, V_PDMA + 6
    def touch_wo():
        w.fifo.append(('i', 's_mov_b32 s%d, 0x2000' % S_TCH))
        w.fifo.append(('vm', 'buffer_load_dword v%d, v%d, s[%d:%d], 0 offen' % (V_DUM, to, S_WO, S_WO + 3), 'touch'))
        w.fifo.append(('vm', 'buffer_load_dword v%d, v%d, s[%d:%d], s%d offen' % (V_DUM, to, S_WO, S_WO + 3, S_TCH), 'touch'))
    pro = opt.get('pro', 1)
    if pro == 0:
        if role == 0:
            w.push_x(0); w.drain()
            I('s_mov_b32 s%d, 0x20000' % S_T0)
            w.vmop('buffer_load_dword v%d, v%d, s[%d:%d], 0 offen' % (V_DUM, tq, S_WQ, S_WQ + 3), 'touch')
            w.vmop('buffer_load_dword v%d, v%d, s[%d:%d], s%d offen' % (V_DUM, tq, S_WQ, S_WQ + 3, S_T0), 'touch')
            for c in range(1, 8): w.push_x(c)
            w.drain()
            touch_wo(); w.drain()
            w.wait_vm(('x', 0))
        else:
            for t in range(4): w.push_wq(t)
            w.drain()
            w.wait_vm(('wq', 0))
    else:
        rot = opt.get('rot', 1)
        def rot_regs(lo, hi):
            if not rot: return
            for i in range(lo, hi):
                d = S_ROT + i
                I('s_add_u32 s%d, s%d, %d' % (d, S_R, i))
                I('s_and_b32 s%d, s%d, 7' % (d, d))
                if role == 0: I('s_lshl_b32 s%d, s%d, 7' % (d, d))
                else:
                    I('s_lshl_b32 s%d, s%d, 19' % (d, d))
                    I('s_add_u32 s%d, s%d, s%d' % (d, d, S_WQK))
        if rot:
            I('s_lshl_b32 s%d, s%d, 1' % (S_R, S_PAIR))
            I('s_add_u32 s%d, s%d, s%d' % (S_R, S_R, S_B))
        rot_regs(0, 1)
        tch = opt.get('tch', 0)
        if role == 0:
            w.push_x(0); w.drain()
            if tch:
                I('s_mov_b32 s%d, 0x20000' % S_T0)
                w.vmop('buffer_load_dword v%d, v%d, s[%d:%d], 0 offen' % (V_DUM, tq, S_WQ, S_WQ + 3), 'touch')
                w.vmop('buffer_load_dword v%d, v%d, s[%d:%d], s%d offen' % (V_DUM, tq, S_WQ, S_WQ + 3, S_T0), 'touch')
                w.vmop('buffer_load_dword v%d, v%d, s[%d:%d], 0 offen' % (V_DUM, tx, S_X, S_X + 3), 'touch')
                w.vmop('buffer_load_dword v%d, v%d, s[%d:%d], 0 offen offset:4092' % (V_DUM, tx, S_X, S_X + 3), 'touch')
            rot_regs(1, 8)
            w.push_x(1); w.drain()
            for n in range(opt.get('ktp', 0)): w.push_touch(n)
            w.drain()
            w.wait_vm(('x', 0))
        else:
            w.push_wq(0); w.drain()
            w.push_wq(1); w.drain()
            rot_regs(1, 8)
            for t in range(2, 4): w.push_wq(t)
            w.wait_vm(('wq', 0))
    w.barrier()
    for it in xfrags(w, 0): w.emit(it)
    for grp in tile_wq(w, 0):
        for it in grp: w.emit(it)
    w.stamp()
    kfree = {3: 0, 5: 1, 7: 2, 11: 3, 13: 4, 15: 5}
    tsched = touch_schedule(opt)
    for s_ in range(16):
        mf = []
        for j in range(8):
            for qt in range(3):
                d = vr(V_S + 4 * (j * 3 + qt), 4)
                mf.append('%s %s, %s, %s, %s' % (MF, d, vr(V_F + 4 * j, 4), vr(V_XF + 12 * (s_ & 1) + 4 * qt, 4), d if s_ else '0'))
        if s_ < 15:
            nxt = tile_wq(w, s_ + 1); nx = xfrags(w, s_ + 1)
            bv = ('wq', s_ + 1) if role == 1 else (('x', (s_ + 1) >> 1) if (s_ + 1) % 2 == 0 else None)
        else:
            nxt = tile_k(w, 0); nx = None
            bv = ('kv', 0) if role == 0 else None
        def pb(s_=s_):
            w.push_wq(s_ + 4)
            if pro and role == 0:
                if s_ % 2 == 0 and 2 + s_ // 2 < 8: w.push_x(2 + s_ // 2)
                if s_ == opt.get('wot', -1): touch_wo()
            if s_ in kfree: w.push_kv(kfree[s_])
            for n in tsched.get(('P1', s_), []): w.push_touch(n)
        step(w, 'P1 step %d' % s_, mf, lambda j, s_=s_: ('f', 'wq', s_, j), ('xf', s_), nxt, nx, bv, pb)
    w.stamp()
    w.C('==== Q exchange')
    T = 200
    c16, g, aW = T, T + 1, T + 4
    I('v_bfe_u32 v%d, v0, 4, 4' % c16)
    I('v_lshrrev_b32 v%d, 8, v0' % g)
    I('v_lshrrev_b32 v%d, 1, v%d' % (aW + 1, g))
    I('s_lshl_b32 s%d, s%d, 3' % (S_T0, S_KH))
    I('v_xor_b32 v%d, s%d, v%d' % (aW + 1, S_T0, aW + 1))
    I('v_xor_b32 v%d, v%d, v%d' % (aW + 1, c16, aW + 1))
    I('v_lshlrev_b32 v%d, 4, v%d' % (aW + 1, aW + 1))
    I('v_lshl_add_u32 v%d, v%d, 8, v%d' % (aW, c16, aW + 1))
    I('v_and_b32 v%d, 1, v%d' % (aW + 1, g))
    I('v_lshl_add_u32 v%d, v%d, 3, v%d' % (aW, aW + 1, aW))
    I('v_add_u32 v%d, s%d, v%d' % (aW, S_QB, aW))
    for k in range(1, 4): I('v_xor_b32 v%d, %d, v%d' % (aW + k, 32 * k, aW))
    aQ = T + 8
    I('s_sub_u32 s%d, s%d, s%d' % (S_T0, S_QB, S_KH8192))
    I('s_sub_u32 s%d, s%d, 0x%x' % (S_T0, S_T0, w.bias[V_AK]))
    for k in range(4):
        assert w.bias[V_AK + k] == w.bias[V_AK]
        I('v_add_u32 v%d, s%d, v%d' % (aQ + k, S_T0, V_AK + k))
    for j in range(8):
        hh, dt = j >> 2, j & 3
        for qt in range(3):
            o = V_S + 4 * (j * 3 + qt)
            I('v_cvt_pk_bf16_f32 v%d, v%d, v%d' % (o, o, o + 1))
            I('v_cvt_pk_bf16_f32 v%d, v%d, v%d' % (o + 1, o + 2, o + 3))
            w.dsop('ds_write_b64 v%d, %s offset:%d' % (aW + dt, vr(o, 2), hh * 24576 + qt * 4096), 'qw')
        w.fill(1)
    w.wait_ds()
    w.barrier()
    for hh in range(2):
        for s_ in range(4):
            for qt in range(3):
                w.dsop('ds_read_b128 %s, v%d offset:%d' % (ar(A_Q[hh] + (qt * 4 + s_) * 4, 4), aQ + s_, hh * 24576 + qt * 4096), ('q', hh))
    w.stamp()
    for hh in range(2):
        kb = 16 * hh; vb = kb + 8
        for t in range(8):
            n = kb + t
            mf = []
            for j in range(8):
                s_, u = j >> 1, j & 1
                for qt in range(3):
                    d = vr(V_S + 8 * (t * 3 + qt) + 4 * u, 4)
                    mf.append('%s %s, %s, %s, %s' % (MF, d, vr(V_F + 4 * j, 4), ar(A_Q[hh] + (qt * 4 + s_) * 4, 4), d if s_ else '0'))
            nxt = tile_k(w, n + 1) if t < 7 else None
            bv = ('kv', n + 1) if (t < 7 and role == 0) else None
            def pb(n=n, t=t, hh=hh):
                w.push_kv(n + 6)
                if hh == 0 and t == 0:
                    for m in range(3): w.push_wo(m)
            step(w, 'QK%d step %d' % (hh, t), mf, lambda j, n=n: ('f', 'kv', n, j), ('q', hh) if t == 0 else None, nxt, None, bv, pb)
        w.stamp()
        softmax(w, hh, vb)
        w.stamp()
        for t in range(8):
            n = vb + t
            mf = []
            for j in range(8):
                for qt in range(3):
                    d = vr(V_O + 4 * (j * 3 + qt), 4)
                    mf.append('%s %s, %s, %s, %s' % (MF, d, vr(V_F + 4 * j, 4), vr(V_S + 4 * (t * 3 + qt), 4), d if t else '0'))
            for qt in range(3):
                d = ar(A_L + 4 * qt, 4)
                mf.append('%s %s, %s, %s, %s' % (MF, d, ar(A_ONE, 4), vr(V_S + 4 * (t * 3 + qt), 4), d if t else '0'))
            m0 = 8 * hh
            nxt = tile_v(w, n + 1) if t < 7 else tile_wo(w, m0)
            bv = (('kv', n + 1) if role == 0 else None) if t < 7 else (('wo', m0) if role == 1 else None)
            def pb(n=n, t=t, hh=hh):
                if not (hh == 0 and n + 6 in (19, 20, 21)): w.push_kv(n + 6)
                if hh == 1 and t in (4, 5, 6): w.push_wo(12 + t - 4)
            step(w, 'PV%d step %d' % (hh, t), mf, lambda j, n=n: ('f', 'kv', n, j), None, nxt, None, bv, pb)
        w.stamp()
        merge(w, hh)
        w.stamp()
        for t in range(8):
            m = 8 * hh + t
            mf = []
            for j in range(8):
                s_, u = j >> 1, j & 1
                for qt in range(3):
                    d = ar((t * 6 + u * 3 + qt) * 4, 4)
                    mf.append('%s %s, %s, %s, %s' % (MF, d, vr(V_F + 4 * j, 4), vr(V_S + (qt * 4 + s_) * 4, 4), d if (hh or s_) else '0'))
            if t < 7:
                nxt = tile_wo(w, m + 1); bv = ('wo', m + 1) if role == 1 else None
            elif hh == 0:
                nxt = tile_k(w, 16); bv = ('kv', 16) if role == 0 else None
            else:
                nxt = None; bv = None
            def pb(m=m, t=t, hh=hh):
                if hh == 0:
                    if t == 0:
                        for n in (19, 20, 21): w.push_kv(n)
                    if m + 4 != 11: w.push_wo(m + 4)
                elif t == 0:
                    w.push_wo(15)
            if hh == 1 and t >= 1:
                if t == 1: w.drain()
                w.xq += epi_items(t - 1, opt)
            step(w, 'OP%d step %d' % (hh, t), mf, lambda j, m=m: ('f', 'wo', m, j), ('ob', hh) if t == 0 else None, nxt, None, bv, pb)
            if w.xq: w.fillx(10 ** 6)
        w.stamp()
    I('s_nop 7')
    for it in epi_items(7, opt): w.emit(it)
    assert not w.fifo and not w.xq
    if opt.get('stamp'):
        w.stamp()
        I('s_waitcnt vmcnt(0)')
        while w.nstamp < 16: w.stamp(0)
        I('s_waitcnt lgkmcnt(0)')
        print('nstamp', w.nstamp, file=sys.stderr)
        I('s_load_dwordx2 s[4:5], s[0:1], 96')
        I('s_lshl_b32 s3, s2, 2')
        I('s_add_u32 s3, s3, s%d' % S_W)
        I('s_lshl_b32 s3, s3, 7')
        I('s_add_u32 s3, s3, 0x4000000')
        I('s_waitcnt lgkmcnt(0)')
        I('s_add_u32 s8, s4, s3')
        I('s_addc_u32 s9, s5, 0')
        I('s_mov_b32 s10, 128')
        I('s_mov_b32 s11, 0x20000')
        I('v_mov_b32 v1, 0')
        for k in range(2 * w.nstamp):
            I('v_mov_b32 v2, s%d' % (64 + k))
            I('buffer_store_dword v2, v1, s[8:11], 0 offen offset:%d' % (4 * k))
    I('s_endpgm')

def k1(a, opt):
    name = 'mha_fused_kernel'
    kernel_begin(a, name)
    a('''  s_cmp_ge_u32 s2, 256
  s_cbranch_scc1 K1_EXIT''')
    a('''  s_and_b32 s3, s2, 4
  s_mul_i32 s3, s3, 10
  s_add_u32 s4, s0, s3
  s_addc_u32 s5, s1, 0
  s_load_dwordx4 s[52:55], s[4:5], 0
  s_load_dwordx4 s[56:59], s[4:5], 16
  s_load_dwordx2 s[60:61], s[4:5], 32
  s_load_dwordx2 s[62:63], s[0:1], 96''')
    if opt.get('pf', 1):
        a('''  s_getpc_b64 s[98:99] ; noemu
PF_PC:
  v_and_b32 v1, 63, v0 ; noemu
  v_lshlrev_b32 v1, 7, v1 ; noemu
  v_lshrrev_b32 v2, 6, v0 ; noemu
  s_lshr_b32 s3, s2, 1 ; noemu
  s_and_b32 s3, s3, 12 ; noemu
  v_add_u32 v2, s3, v2 ; noemu
  v_lshl_add_u32 v1, v2, 13, v1 ; noemu
  v_min_u32 v1, TEXT_END-PF_PC-4, v1 ; noemu
  v_add_co_u32 v2, vcc, s98, v1 ; noemu
  v_mov_b32 v3, s99 ; noemu
  v_addc_co_u32 v3, vcc, 0, v3, vcc ; noemu
  global_load_dword v%d, v[2:3], off ; noemu''' % V_DUM)
    a('''  v_lshrrev_b32 v1, 6, v0
  s_lshr_b32 s3, s2, 3
  v_readfirstlane_b32 s%(W)d, v1
  s_and_b32 s%(B)d, s3, 7
  s_lshr_b32 s3, s3, 3
  s_mov_b32 s97, s3
  s_and_b32 s6, s2, 3
  s_lshl_b32 s7, s6, 2
  s_add_u32 s7, s7, s3
  s_lshr_b32 s%(I)d, s%(W)d, 1
  s_and_b32 s%(KH)d, s%(W)d, 1
  s_lshl_b32 s%(KH8192)d, s%(KH)d, 13
  s_mul_i32 s%(KH6144)d, s%(KH)d, 6144
  s_lshl_b32 s%(WQK)d, s%(KH)d, 17
  s_lshl_b32 s%(WOK)d, s%(KH)d, 16
  s_mul_i32 s%(QB)d, s%(I)d, 12288
  s_add_u32 s%(QB)d, s%(QB)d, 98304
  s_mul_i32 s%(SBW)d, s%(W)d, 12288
  s_add_u32 s%(SBW)d, s%(SBW)d, 16384
  s_xor_b32 s3, s%(W)d, 1
  s_mul_i32 s%(SBP)d, s3, 12288
  s_add_u32 s%(SBP)d, s%(SBP)d, 16384
  s_mul_i32 s%(STW)d, s%(W)d, 1536
  s_add_u32 s%(STW)d, s%(STW)d, 147456
  s_mul_i32 s%(STP)d, s3, 1536
  s_add_u32 s%(STP)d, s%(STP)d, 147456
  s_mul_i32 s%(OB)d, s%(I)d, 24576
  s_add_u32 s%(OB)d, s%(OB)d, 16384
  s_waitcnt lgkmcnt(0)''' % dict(W=S_W, B=S_B, I=S_I, KH=S_KH, KH8192=S_KH8192, KH6144=S_KH6144, WQK=S_WQK, WOK=S_WOK,
                                QB=S_QB, SBW=S_SBW, SBP=S_SBP, STW=S_STW, STP=S_STP, OB=S_OB))
    a('''  s_mul_i32 s3, s%(B)d, 98304
  s_add_u32 s8, s52, s3
  s_addc_u32 s9, s53, 0
  s_mov_b32 s10, 98304
  s_mov_b32 s11, 0x20000
  s_lshl_b32 s3, s%(B)d, 22
  s_lshl_b32 s6, s7, 18
  s_add_u32 s3, s3, s6
  s_add_u32 s12, s54, s3
  s_addc_u32 s13, s55, 0
  s_mov_b32 s14, 0x40000
  s_mov_b32 s15, 0x20000
  s_add_u32 s16, s56, s3
  s_addc_u32 s17, s57, 0
  s_mov_b32 s18, 0x40000
  s_mov_b32 s19, 0x20000
  s_lshl_b32 s3, s7, 9
  s_add_u32 s20, s58, s3
  s_addc_u32 s21, s59, 0
  s_sub_u32 s22, 0x400000, s3
  s_mov_b32 s23, 0x20000
  s_add_u32 s24, s60, s6
  s_addc_u32 s25, s61, 0
  s_mov_b32 s26, 0x40000
  s_mov_b32 s27, 0x20000
  s_and_b32 s3, s2, 4
  s_lshl_b32 s3, s3, 1
  s_add_u32 s3, s3, s%(B)d
  s_lshl_b32 s3, s3, 4
  s_add_u32 s3, s3, s7
  s_lshl_b32 s3, s3, 2
  s_add_u32 s3, s3, s%(W)d
  s_mul_i32 s3, s3, 24576
  s_add_u32 s28, s62, s3
  s_addc_u32 s29, s63, 0
  s_mov_b32 s30, 24576
  s_mov_b32 s31, 0x20000
  s_cmp_eq_u32 s%(I)d, 0
  s_cbranch_scc0 K1_ROLE1''' % dict(B=S_B, W=S_W, I=S_I))
    tot = 0
    bars = []
    for role in range(2):
        w = Wave(role, opt)
        body(w)
        bars.append(w.nbar)
        why = []
        L, n = hz.fix(w.L, why)
        tot += n
        if opt.get('v'):
            for x in why: print('nop', role, x, file=sys.stderr)
        if role == 1: a.label('K1_ROLE1')
        for l in L: a(l)
    assert bars[0] == bars[1]
    a.label('K1_EXIT')
    a('  s_endpgm')
    print('K1 barriers', bars[0], 'nop states', tot, file=sys.stderr)
    return name

def k2(a, opt):
    name = 'mha_reduce_kernel'
    kernel_begin(a, name)
    L = []
    I = lambda t: L.append('  ' + t)
    I('s_cmp_ge_u32 s2, 384')
    I('s_cbranch_scc1 K2_EXIT')
    I('s_load_dwordx2 s[4:5], s[0:1], 96')
    I('s_load_dwordx2 s[6:7], s[0:1], 80')
    I('v_lshrrev_b32 v1, 6, v0')
    I('v_and_b32 v2, 63, v0')
    I('v_readfirstlane_b32 s16, v1')
    I('s_mul_i32 s17, s2, 2731')
    I('s_lshr_b32 s17, s17, 16')
    I('s_mul_i32 s18, s17, 24')
    I('s_sub_u32 s18, s2, s18')
    I('s_lshl_b32 s18, s18, 2')
    I('s_add_u32 s18, s18, s16')
    I('s_mul_i32 s19, s18, 2731')
    I('s_lshr_b32 s19, s19, 16')
    I('s_mul_i32 s20, s19, 24')
    I('s_sub_u32 s20, s18, s20')
    I('s_mul_i32 s21, s20, 21846')
    I('s_lshr_b32 s21, s21, 16')
    I('s_mul_i32 s22, s21, 3')
    I('s_sub_u32 s22, s20, s22')
    I('s_waitcnt lgkmcnt(0)')
    I('s_mul_i32 s3, s17, 1572864')
    I('s_lshl_b32 s23, s18, 10')
    I('s_add_u32 s3, s3, s23')
    I('s_add_u32 s8, s4, s3')
    I('s_addc_u32 s9, s5, 0')
    I('s_mov_b32 s10, %d' % (15 * 98304 + 1024))
    I('s_mov_b32 s11, 0x20000')
    I('v_lshlrev_b32 v3, 4, v2')
    for p in range(16):
        I('s_mov_b32 s24, %d' % (p * 98304))
        I('buffer_load_dwordx4 v[%d:%d], v3, s[8:11], s24 offen' % (8 + 4 * p, 11 + 4 * p))
    I('s_and_b32 s23, s17, 7')
    I('s_lshr_b32 s25, s17, 3')
    I('s_mul_i32 s23, s23, 96')
    I('s_lshr_b32 s26, s19, 1')
    I('s_mul_i32 s26, s26, 48')
    I('s_add_u32 s23, s23, s26')
    I('s_lshl_b32 s26, s22, 4')
    I('s_add_u32 s23, s23, s26')
    I('s_lshl_b32 s23, s23, 11')
    I('s_lshl_b32 s25, s25, 10')
    I('s_add_u32 s23, s23, s25')
    I('s_lshl_b32 s26, s21, 7')
    I('s_add_u32 s23, s23, s26')
    I('s_and_b32 s26, s19, 1')
    I('s_lshl_b32 s26, s26, 6')
    I('s_add_u32 s23, s23, s26')
    I('v_and_b32 v4, 15, v2')
    I('v_lshlrev_b32 v4, 11, v4')
    I('v_bfe_u32 v5, v2, 4, 1')
    I('v_lshl_add_u32 v4, v5, 5, v4')
    I('v_lshrrev_b32 v5, 5, v2')
    I('v_lshl_add_u32 v4, v5, 4, v4')
    I('s_mov_b32 s12, s6')
    I('s_mov_b32 s13, s7')
    I('s_mov_b32 s14, %d' % (8 * 96 * 1024 * 2))
    I('s_mov_b32 s15, 0x20000')
    I('s_mov_b32 s27, 0xffff0000')
    for p in range(16):
        I('s_waitcnt vmcnt(%d)' % (15 - p))
        for k in range(4):
            src = 8 + 4 * p + k
            if p == 0:
                I('v_lshlrev_b32 v%d, 16, v%d' % (80 + 2 * k, src))
                I('v_and_b32 v%d, s27, v%d' % (81 + 2 * k, src))
            else:
                I('v_lshlrev_b32 v6, 16, v%d' % src)
                I('v_and_b32 v7, s27, v%d' % src)
                I('v_add_f32 v%d, v%d, v6' % (80 + 2 * k, 80 + 2 * k))
                I('v_add_f32 v%d, v%d, v7' % (81 + 2 * k, 81 + 2 * k))
    for k in range(4): I('v_cvt_pk_bf16_f32 v%d, v%d, v%d' % (88 + k, 80 + 2 * k, 81 + 2 * k))
    I('buffer_store_dwordx4 v[88:91], v4, s[12:15], s23 offen')
    L2, n = hz.fix(L)
    for l in L2: a(l)
    a.label('K2_EXIT')
    a('  s_endpgm')
    a.label('TEXT_END')
    return name

def generate(opt):
    a = Asm()
    n1 = k1(a, opt)
    n2 = k2(a, opt)
    ls = [(n1, 256, 256, 163840), (n2, 384, 256, 0)]
    if opt.get('only') == 1: ls = ls[:1]
    if opt.get('only') == 2: ls = ls[1:]
    return assemble_file(ls, a.text(), [kernel_desc(n1, 512, 256), kernel_desc(n2, 96, 96)])

if __name__ == '__main__':
    out = sys.argv[1]
    opt = {}
    for x in sys.argv[2:]:
        k, v = x.split('=')
        opt[k] = int(v)
    open(out, 'w').write(generate(opt))
```
